```python
import torch

def _softmax(x, axis=-1):
    return torch.softmax(x, dim=axis)
def _gelu(x):
    return torch.nn.functional.gelu(x, approximate="tanh")
def _silu(x):
    return torch.nn.functional.silu(x)
def _sigmoid(x):
    return torch.sigmoid(x)
def _layernorm(x, axis=-1, eps=1e-5):
    m = x.mean(dim=axis, keepdim=True)
    v = x.var(dim=axis, keepdim=True, unbiased=False)
    return (x - m) / torch.sqrt(v + eps)
def _scatter_add(tgt, idx, src, axis=0):
    return tgt.clone().index_add_(axis, idx, src)
def _segment_sum(src, seg, n):
    out = torch.zeros((n,) + src.shape[1:], dtype=src.dtype)
    return out.index_add_(0, seg, src)
def _pad(x, pw):
    flat = tuple(v for pair in reversed(pw) for v in pair)
    return torch.nn.functional.pad(x, flat)

kernel_name = 'recurrent_scan__gqa_block_cached__glu_gated_bilinear__prompt'

def setup_inputs():

    _w = (lambda a: (lambda t: t.to(torch.bfloat16) if t.is_floating_point() else t)(torch.as_tensor(a)))
    def _A_setup():
        B, Sq, D = 1, 2048, 512
        Hq, Hkv, Sk, Dh = 32, 8, 2048, 128
        assert Hq % Hkv == 0, (Hq, Hkv)
        return {
            "x": _w((lambda *s: torch.randn(*s, dtype=torch.bfloat16) * 0.05)(B, Sq, D)),
            "k_cache": _w((lambda *s: torch.randn(*s, dtype=torch.bfloat16) * 1.6)(B, Hkv, Sk, Dh)),
            "v_cache": _w((lambda *s: torch.randn(*s, dtype=torch.bfloat16) * 1.6)(B, Hkv, Sk, Dh)),
            "wq": _w((lambda *s: torch.randn(*s, dtype=torch.bfloat16) * 1.6)(D, Hq * Dh) * (D ** -0.5)),
            "wo": _w((lambda *s: torch.randn(*s, dtype=torch.bfloat16) * 1.6)(Hq * Dh, D) * ((Hq * Dh) ** -0.5)),
        }
    _A_in = _A_setup()

    def _B_setup():
        B, S, D, F = 1, 2048, 512, 1792
        return {
            "x": _w((lambda *s: torch.randn(*s, dtype=torch.bfloat16) * 0.05)(B, S, D)),
            "w_gate": _w((lambda *s: torch.randn(*s, dtype=torch.bfloat16) * 0.2)(D, F) * (D ** -0.5)),
            "w_up": _w((lambda *s: torch.randn(*s, dtype=torch.bfloat16) * 0.2)(D, F) * (D ** -0.5)),
            "w_down": _w((lambda *s: torch.randn(*s, dtype=torch.bfloat16) * 0.2)(F, D) * (F ** -0.5)),
        }
    _B_in = _B_setup()

    return {
        "A_x": _A_in["x"],
        "A_k_cache": _A_in["k_cache"],
        "A_v_cache": _A_in["v_cache"],
        "A_wq": _A_in["wq"],
        "A_wo": _A_in["wo"],
        "B_x": _B_in["x"],
        "B_w_gate": _B_in["w_gate"],
        "B_w_up": _B_in["w_up"],
        "B_w_down": _B_in["w_down"],
    }

def reference(A_x, A_k_cache, A_v_cache, A_wq, A_wo, B_x, B_w_gate, B_w_up, B_w_down):
    def _A_ref(x, k_cache, v_cache, wq, wo):
        B, Sq, D = x.shape
        Hq, Dh = 32, 128
        Hkv = k_cache.shape[1]
        rep = Hq // Hkv
        q = (lambda x, *d: x.permute(*d))((x @ wq).reshape(B, Sq, Hq, Dh), 0, 2, 1, 3)
        k = (lambda x, n, axis: torch.repeat_interleave(x, n, dim=axis))(k_cache, rep, axis=1)
        v = (lambda x, n, axis: torch.repeat_interleave(x, n, dim=axis))(v_cache, rep, axis=1)
        scores = torch.einsum("bhqd,bhkd->bhqk", q, k) * (Dh ** -0.5)
        p = _softmax(scores, axis=-1)
        o = torch.einsum("bhqk,bhkd->bhqd", p, v)
        return (lambda x, *d: x.permute(*d))(o, 0, 2, 1, 3).reshape(B, Sq, Hq * Dh) @ wo

    def _B_ref(x, w_gate, w_up, w_down):
        g = torch.einsum("bsd,df->bsf", x, w_gate)
        u = torch.einsum("bsd,df->bsf", x, w_up)
        h = g * u
        return torch.einsum("bsf,fd->bsd", h, w_down)

    x = A_x
    xn = _layernorm(x, axis=-1)
    s = _A_ref(xn, A_k_cache, A_v_cache, A_wq, A_wo)
    g = _silu(_B_ref(xn, B_w_gate, B_w_up, B_w_down))
    return x + s * g
```

```python
import re


class Asm:
    def __init__(self):
        self.lines = []

    def __call__(self, s):
        for l in s.split("\n"):
            l = l.strip()
            if l:
                self.lines.append(l)

    def label(self, name):
        self.lines.append(name + ":")

    def comment(self, s):
        self.lines.append("; " + s)

    def text(self):
        out = []
        for l in self.lines:
            if l.endswith(":") or l.startswith(".") or l.startswith(";"):
                out.append(l)
            else:
                out.append("    " + l)
        return "\n".join(out) + "\n"


def v(i, n=1):
    return f"v{i}" if n == 1 else f"v[{i}:{i + n - 1}]"


def a(i, n=1):
    return f"a{i}" if n == 1 else f"a[{i}:{i + n - 1}]"


def s(i, n=1):
    return f"s{i}" if n == 1 else f"s[{i}:{i + n - 1}]"


_REG = re.compile(r"^(-|abs\(|\|)?([vas])(?:(\d+)|\[(\d+):(\d+)\])\)?\|?$")
TRANS = ("v_exp_f32", "v_log_f32", "v_rcp_f32", "v_rsq_f32", "v_sqrt_f32", "v_sin_f32", "v_cos_f32", "v_rcp_iflag_f32")


def regs_of(op):
    op = op.strip()
    if op in ("vcc", "exec", "m0", "scc"):
        return {op}
    if op in ("vcc_lo", "vcc_hi"):
        return {"vcc"}
    m = _REG.match(op)
    if not m:
        return set()
    k = m.group(2)
    if m.group(3) is not None:
        return {k + m.group(3)}
    return {k + str(i) for i in range(int(m.group(4)), int(m.group(5)) + 1)}


class Ins:
    def __init__(self, line):
        self.line = line
        body = line.split(";")[0].strip()
        parts = body.split(None, 1)
        self.op = parts[0]
        rest = parts[1] if len(parts) > 1 else ""
        ops = [o.strip() for o in rest.split(",")] if rest else []
        if ops:
            last = ops[-1].split()
            self.mods = last[1:]
            ops[-1] = last[0] if last else ""
        else:
            self.mods = []
        self.ops = ops
        op = self.op
        self.is_mfma = op.startswith("v_mfma")
        self.is_valu = op.startswith("v_") and not self.is_mfma
        self.is_ds = op.startswith("ds_")
        self.is_vmem = op.startswith("buffer_") or op.startswith("global_")
        self.is_salu = op.startswith("s_")
        self.is_trans = any(op.startswith(t) for t in TRANS)
        self.w = set()
        self.r = set()
        R = [regs_of(o) for o in ops]
        if self.is_mfma:
            self.w = R[0]
            self.srcA, self.srcB, self.srcC = R[1], R[2], R[3]
            self.r = R[1] | R[2] | R[3]
            self.passes = 8 if "32x32x16" in op else 4 if "16x16x32" in op else None
            assert self.passes, line
        elif self.is_valu:
            if op.startswith("v_cmp"):
                self.w = R[0]
                self.r = set().union(*R[1:])
                if op.startswith("v_cmpx"):
                    self.w = self.w | {"exec"}
            elif op.startswith("v_permlane") and "swap" in op:
                self.w = R[0] | R[1]
                self.r = R[0] | R[1]
            elif op.startswith(("v_add_co", "v_sub_co", "v_addc_co", "v_subb_co", "v_subrev_co")):
                self.w = R[0] | R[1]
                self.r = set().union(*R[2:])
            elif op.startswith("v_nop"):
                pass
            else:
                self.w = R[0]
                self.r = set().union(*R[1:]) if len(R) > 1 else set()
                if op.startswith(("v_fmac", "v_dot2c", "v_pk_fmac", "v_writelane")) or "_dpp" in op:
                    self.r |= R[0]
                if op.startswith("v_cndmask") and len(ops) == 3:
                    self.r |= {"vcc"}
        elif self.is_ds:
            if op.startswith("ds_read") or op.startswith("ds_bpermute") or op.startswith("ds_swizzle"):
                self.w = R[0]
                self.r = set().union(*R[1:])
            else:
                self.r = set().union(*R)
        elif self.is_vmem:
            lds = "lds" in self.mods or "_lds_" in op
            if op.startswith(("buffer_wbl2", "buffer_inv")):
                pass
            elif lds:
                self.r = set().union(*R) | {"m0"}
            elif "load" in op:
                self.w = R[0]
                self.r = set().union(*R[1:])
            else:
                self.r = set().union(*R)
                if op.startswith("buffer_"):
                    self.data = R[0]
                else:
                    self.data = R[1]
                if "atomic" in op and "sc0" in self.mods:
                    self.w = R[0]
            self.lds = lds
        elif self.is_salu:
            if op.startswith(("s_cmp", "s_waitcnt", "s_nop", "s_barrier", "s_cbranch", "s_branch", "s_endpgm",
                              "s_setprio", "s_sleep", "s_bitcmp")):
                self.r = set().union(*R) if R else set()
            else:
                self.w = R[0] if R else set()
                self.r = set().union(*R[1:]) if len(R) > 1 else set()
                if "saveexec" in op:
                    self.w = self.w | {"exec"}
        self.states = 1
        if op == "s_nop":
            self.states = int(ops[0], 0) + 1


def check_hazards(lines, where=""):
    ins = [Ins(l) for l in lines if not (l.endswith(":") or l.startswith(".") or l.startswith(";"))]
    probs = []
    for j, c in enumerate(ins):
        dist = 0
        for i in range(j - 1, max(-1, j - 24), -1):
            p = ins[i]
            need = 0
            why = ""
            if p.is_valu and c.is_mfma and (p.w & c.r):
                need, why = 2, "VALU->MFMA"
            if p.is_mfma:
                n_ab = {8: 12, 4: 8}[p.passes]
                n_c = {8: 10, 4: 6}[p.passes]
                if c.is_mfma:
                    if p.w & (c.srcA | c.srcB):
                        need, why = max(need, n_ab), "MFMA D->MFMA A/B"
                    if (p.w & c.srcC) and not (p.w == c.srcC and p.passes == c.passes):
                        need, why = max(need, n_c), "MFMA D->MFMA C partial"
                    if (p.w & c.w) and not (p.w & c.srcC):
                        pass
                elif (c.is_valu or c.is_ds or c.is_vmem) and (p.w & (c.r | c.w)):
                    need, why = max(need, n_ab), "MFMA D->VALU/mem"
                if c.is_valu and (p.srcC & c.w):
                    need, why = max(need, {8: 7, 4: 3}[p.passes]), "MFMA C WAR"
            if p.is_trans and c.is_valu and not c.is_trans and (p.w & c.r):
                need, why = max(need, 1), "trans->VALU"
            if p.is_trans and (c.is_ds or c.is_vmem) and (p.w & c.r):
                need, why = max(need, 1), "trans->mem"
            if p.is_valu and c.op.startswith("v_permlane") and (p.w & c.r):
                need, why = max(need, 2), "VALU->permlane"
            if p.is_valu and "_dpp" in c.op and (p.w & c.r):
                need, why = max(need, 2), "VALU->DPP"
            if p.is_valu and c.op.startswith(("v_readfirstlane", "v_readlane")) and (p.w & c.r):
                need, why = max(need, 1), "VALU->readlane"
            psg = {r for r in p.w if r[0] == "s" or r == "vcc"}
            if p.is_valu and psg:
                if c.is_vmem and (psg & c.r):
                    need, why = max(need, 5), "VALU sgpr->VMEM"
                if c.is_valu and (psg & c.r):
                    need, why = max(need, 2), "VALU sgpr->VALU"
                if c.is_salu and (psg & c.r):
                    need, why = max(need, 1), "VALU sgpr->SALU(pad)"
            if p.is_salu and "m0" in p.w and c.is_vmem and getattr(c, "lds", False):
                need, why = max(need, 1), "M0->LDS DMA"
            if p.is_vmem and hasattr(p, "data") and len(p.data) >= 3 and (p.data & c.w) and (c.is_valu or c.is_ds or c.is_vmem or c.is_mfma):
                need, why = max(need, 2), "store data WAR"
            if p.is_valu and "exec" in p.w and c.is_mfma:
                need, why = max(need, 4), "exec->MFMA"
            if need > dist:
                probs.append(f"{where}: {why}: need {need} have {dist}\n    {p.line}\n    {c.line}")
            dist += p.states
            if dist >= 20:
                break
    return probs
```

```python
import sys, os, struct
sys.path.insert(0, os.path.dirname(os.path.abspath(__file__)))
from asmlib import Asm, v, a, s, check_hazards

NAME = "recurrent_scan__gqa_block_cached__glu_gated_bilinear__prompt"
OPT = dict(stamps=0, force_slow=0, warm=1)

WS_H = 0
WS_H_SZ = 32 * 2 * 112 * 1024
WS_WD = 8 << 20
WS_S = 16 << 20
WS_DBG = 64 << 20
WS_SIZE = 268435456

RING = 65536
RPITCH = 24576
KVS = 2


def f32(x):
    return "0x%08x" % struct.unpack("<I", struct.pack("<f", x))[0]


ACC = 0
S0, S1 = 128, 144
NM0, NM1 = 160, 176
P0, P1 = 192, 200
L0, L1 = 208, 209
KAD = 210
VAD = 218
VOK0, VOK1, VOV0, VOV1 = 222, 223, 224, 225
VOG0, VOG1, VOQ0, VOQ1, VOO0, VOO1 = 226, 227, 228, 229, 230, 231
WAD = 232
BAD = 234
LANE16 = 235
LANE = 236
T0 = 238
QF, KF, VF = 0, 64, 96
WF, BF = 128, 160

sX, sWA, sWB, sK, sV, sWS = 28, 32, 36, 40, 44, 48
sW, sG, sP, sRB = 52, 53, 54, 55
sOFF, sSTEP, sCNT, sKV, sKVSTEP = 56, 57, 58, 59, 60
sT = 62
pX, pK, pV, pWQ, pWO, pWG, pWU, pWD, pOUT, pDBG, pWS = 4, 6, 8, 10, 12, 16, 18, 20, 22, 24, 26


def srd(A, d, ptr, size, bias=0):
    if bias == 0:
        A(f"s_mov_b32 {s(d)}, {s(ptr)}")
        A(f"s_mov_b32 {s(d+1)}, {s(ptr+1)}")
    elif bias > 0:
        A(f"s_add_u32 {s(d)}, {s(ptr)}, {bias}")
        A(f"s_addc_u32 {s(d+1)}, {s(ptr+1)}, 0")
    else:
        A(f"s_sub_u32 {s(d)}, {s(ptr)}, {-bias}")
        A(f"s_subb_u32 {s(d+1)}, {s(ptr+1)}, 0")
    A(f"s_mov_b32 {s(d+2)}, {size}")
    A(f"s_mov_b32 {s(d+3)}, 0x20000")


def mfma(d, A_, B_, c):
    return f"v_mfma_f32_32x32x16_bf16 {d}, {A_}, {B_}, {c}"


def acc(nb, b):
    return ACC + 16 * (nb * 2 + b)


STAMP_N = [0]


def stamp(A, name):
    if not OPT["stamps"]:
        return
    i = STAMP_N[0]
    STAMP_N[0] += 1
    assert i < 10
    A(f"s_memtime {s(80 + 2 * i, 2)}")
    A("s_waitcnt lgkmcnt(0)")


def dma_w(slot, vo0, vo1):
    pre = [f"s_add_u32 m0, {s(sRB)}, {slot * 4096}"]
    d = [f"buffer_load_dwordx4 {v(vo0)}, {s(sWA, 4)}, {s(sOFF)} offen lds",
         f"buffer_load_dwordx4 {v(vo1)}, {s(sWA, 4)}, {s(sOFF)} offen offset:1024 lds",
         f"buffer_load_dwordx4 {v(vo0)}, {s(sWB, 4)}, {s(sOFF)} offen offset:2048 lds",
         f"buffer_load_dwordx4 {v(vo1)}, {s(sWB, 4)}, {s(sOFF)} offen offset:3072 lds"]
    post = [f"s_add_u32 {s(sOFF)}, {s(sOFF)}, {s(sSTEP)}"]
    return pre, d, post


def dma_kv(slot, konly=False):
    pre = [f"s_add_u32 m0, {s(sRB)}, {slot * 4096}"]
    d = [f"buffer_load_dwordx4 {v(VOK0)}, {s(sK, 4)}, {s(sKV)} offen lds",
         f"buffer_load_dwordx4 {v(VOK1)}, {s(sK, 4)}, {s(sKV)} offen offset:1024 lds"]
    if not konly:
        d += [f"buffer_load_dwordx4 {v(VOV0)}, {s(sV, 4)}, {s(sKV)} offen offset:2048 lds",
              f"buffer_load_dwordx4 {v(VOV1)}, {s(sV, 4)}, {s(sKV)} offen offset:3072 lds"]
    post = [f"s_add_u32 {s(sKV)}, {s(sKV)}, {s(sKVSTEP)}"]
    return pre, d, post


def emit_item(A, item):
    pre, d, post = item
    for x in pre:
        A(x)
    A("s_nop 0")
    for x in d + post:
        A(x)


def setw_gu():
    A = Asm()
    srd(A, sWA, pWG, 512 * 3584)
    srd(A, sWB, pWU, 512 * 3584 + 2048, -2048)
    A(f"s_lshl_b32 {s(sOFF)}, {s(sG)}, 9")
    A(f"s_lshl_b32 {s(sT)}, {s(sW)}, 7")
    A(f"s_add_u32 {s(sOFF)}, {s(sOFF)}, {s(sT)}")
    A(f"s_mov_b32 {s(sSTEP)}, {16 * 3584}")
    return A.lines


def setw_q():
    A = Asm()
    srd(A, sWA, pWQ, 512 * 8192)
    srd(A, sWB, pWQ, 512 * 8192 + 2048 - 128, -2048 + 128)
    A(f"s_lshl_b32 {s(sOFF)}, {s(sG)}, 10")
    A(f"s_lshl_b32 {s(sT)}, {s(sW)}, 8")
    A(f"s_add_u32 {s(sOFF)}, {s(sOFF)}, {s(sT)}")
    A(f"s_mov_b32 {s(sSTEP)}, {16 * 8192}")
    return A.lines


def setw_o():
    A = Asm()
    srd(A, sWA, pWO, 4096 * 1024)
    srd(A, sWB, pWO, 4096 * 1024 + 2048 - 128, -2048 + 128)
    A(f"s_lshl_b32 {s(sOFF)}, {s(sG)}, 19")
    A(f"s_lshl_b32 {s(sT)}, {s(sW)}, 8")
    A(f"s_add_u32 {s(sOFF)}, {s(sOFF)}, {s(sT)}")
    A(f"s_mov_b32 {s(sSTEP)}, {16 * 1024}")
    return A.lines


def frag_reads(par, slot, boff):
    r = []
    for b in range(2):
        r.append(f"ds_read_b128 {a(BF + par * 8 + b * 4, 4)}, {v(BAD)} offset:{boff + b * 1024}")
    for nb in range(4):
        X, cb = nb // 2, nb % 2
        for jj in range(2):
            r.append(f"ds_read_b64_tr_b16 {a(WF + par * 16 + nb * 4 + jj * 2, 2)}, {v(WAD + cb)} "
                     f"offset:{slot * 4096 + X * 2048 + jj * 512}")
    return r


def gemm_step(A, par, first, reads, item, vm, extra=None):
    A(f"s_waitcnt vmcnt({vm}) lgkmcnt(0)" if vm is not None else "s_waitcnt lgkmcnt(0)")
    fill = [[] for _ in range(8)]
    for i, r in enumerate(reads or []):
        fill[i // 2].append(r)
    if item is not None:
        pre, d, post = item
        fill[3] += pre
        for i, x in enumerate(d):
            fill[4 + i].append(x)
        fill[7] += post
    for i, x in enumerate(extra or []):
        fill[min(7, i * 8 // max(1, len(extra)))].append(x)
    k = 0
    for nb in range(4):
        for b in range(2):
            c = "0" if first else v(acc(nb, b), 16)
            A(mfma(v(acc(nb, b), 16), a(WF + par * 16 + nb * 4, 4), a(BF + par * 8 + b * 4, 4), c))
            for x in fill[k]:
                A(x)
            k += 1


def gemm_phase(A, tag, c, vo, tail_items, tail_vm, last_reads, pre_tail=None):
    A.comment(f"---- gemm {tag}")
    slot = lambda j: (j + c) % 6
    for j in range(2):
        gemm_step(A, j % 2, j == 0, frag_reads((j + 1) % 2, slot(j + 1), (j + 1) * 2048), dma_w(slot(j), *vo), 16)
    A(f"s_mov_b32 {s(sCNT)}, 4")
    A.label(f"L_{tag}")
    body = Asm()
    for jj in range(6):
        j = 2 + jj
        ex = None
        if jj == 5:
            ex = None
        gemm_step(body, j % 2, False, frag_reads((j + 1) % 2, slot(j + 1), (j + 1) * 2048), dma_w(slot(j), *vo), 16)
    body(f"v_add_u32 {v(BAD)}, {6 * 2048}, {v(BAD)}")
    body(f"s_sub_u32 {s(sCNT)}, {s(sCNT)}, 1")
    body(f"s_cmp_lg_u32 {s(sCNT)}, 0")
    A.lines += body.lines
    A(f"s_cbranch_scc1 L_{tag}")
    for p in check_hazards(body.lines + body.lines, f"loop {tag}"):
        print("HAZARD", p)
    for x in pre_tail or []:
        A(x)
    for jj in range(6):
        j = 26 + jj
        if j < 31:
            rd = frag_reads((j + 1) % 2, slot(j + 1), (j + 1 - 24) * 2048)
        else:
            rd = last_reads
            if rd:
                A(f"v_mov_b32 {v(BAD)}, {v(LANE16)}")
        it = tail_items[jj]
        if isinstance(it, tuple) and len(it) == 4:
            for x in it[0]:
                A(x)
            it = it[1:]
        gemm_step(A, j % 2, False, rd, it, tail_vm[jj])


def kread(sl, st):
    return f"ds_read_b128 {a(KF + 4 * st, 4)}, {v(KAD + st)} offset:{sl * 4096}"


def vread(sl, j):
    f, jj = j // 2, j % 2
    ks, db = f // 4, f % 4
    return f"ds_read_b64_tr_b16 {a(VF + 4 * f + 2 * jj, 2)}, {v(VAD + db)} offset:{ks * 49152 + sl * 4096 + 2048 + jj * 1024}"


def sm_ops(Sx, Px, Lx, k):
    o = []
    if k < 16:
        o.append(f"v_exp_f32 {v(Sx + k)}, {v(Sx + k)}")
    if 1 <= k <= 16:
        o.append(f"v_add_f32 {v(Lx)}, {v(Lx)}, {v(Sx + k - 1)}")
    if k >= 2 and k % 2 == 0:
        o.append(f"v_cvt_pk_bf16_f32 {v(Px + (k - 2) // 2)}, {v(Sx + k - 2)}, {v(Sx + k - 1)}")
    return o


def qk(b, st, c):
    Sx = (S0, S1)[b]
    return mfma(v(Sx, 16), a(KF + 4 * st, 4), a(QF + (b * 8 + st) * 4, 4), c if st == 0 else v(Sx, 16))


def pv(b, f):
    ks, db = f // 4, f % 4
    Px = (P0, P1)[b]
    return mfma(v(acc(db, b), 16), a(VF + 4 * f, 4), v(Px + 4 * ks, 4), v(acc(db, b), 16))


def attn_iter(A, u, hook=None):
    m = [qk(0, st, v(NM0, 16)) for st in range(8)] + [pv(1, f) for f in range(8)] + \
        [qk(1, st, v(NM1, 16)) for st in range(8)] + [pv(0, f) for f in range(8)]
    fill = [[] for _ in range(32)]
    pre = [[] for _ in range(32)]
    for k in range(17):
        fill[(10 + k) % 32] += sm_ops(S0, P0, L0, k)
    for k in range(17):
        sl = (26 + k) % 32
        fill[sl] = sm_ops(S1, P1, L1, k) + fill[sl] if k == 16 else fill[sl] + sm_ops(S1, P1, L1, k)
    vs = [8, 9, 9, 10, 11, 11, 12, 13, 14, 15, 16, 17, 18, 19, 20, 21]
    for j, sl in enumerate(vs):
        fill[sl].append(vread(u, j))
    for st in range(8):
        fill[22 + st].append(kread(u, st))
    pre[0].append("s_waitcnt vmcnt(8) lgkmcnt(0)")
    pre[24].append("s_waitcnt lgkmcnt(2)")
    dpre, d, dpost = dma_kv(KVS + (u - 1) % 4)
    fill[0] += dpre + ["s_barrier"]
    for i, x in enumerate(d):
        fill[1 + 2 * i].append(x)
    fill[7] += dpost
    for i in range(32):
        for x in pre[i]:
            A(x)
        A(m[i])
        for x in fill[i]:
            A(x)
        if hook and i in hook:
            for x in hook[i]:
                A(x) if not x.endswith(":") else A.label(x[:-1])


def rowmax(A, Sx, dst, t):
    A(f"v_max3_f32 {v(dst)}, {v(Sx)}, {v(Sx + 1)}, {v(Sx + 2)}")
    for i in range(3, 15, 2):
        A(f"v_max3_f32 {v(dst)}, {v(dst)}, {v(Sx + i)}, {v(Sx + i + 1)}")
    A(f"v_max_f32 {v(dst)}, {v(dst)}, {v(Sx + 15)}")
    A(f"v_mov_b32 {v(t)}, {v(dst)}")
    A("s_nop 1")
    A(f"v_permlane32_swap_b32 {v(t)}, {v(dst)}")
    A(f"v_max_f32 {v(dst)}, {v(dst)}, {v(t)}")


def halfsum(A, Lx, t):
    A(f"v_mov_b32 {v(t)}, {v(Lx)}")
    A("s_nop 1")
    A(f"v_permlane32_swap_b32 {v(t)}, {v(Lx)}")
    A(f"v_add_f32 {v(Lx)}, {v(Lx)}, {v(t)}")


def o_to_lds(A):
    A(f"v_rcp_f32 {v(T0)}, {v(L0)}")
    A(f"v_rcp_f32 {v(T0 + 2)}, {v(L1)}")
    A(f"s_lshl_b32 {s(sT)}, {s(sW)}, 14")
    A(f"v_add_u32 {v(T0 + 4)}, {s(sT)}, {v(LANE16)}")
    for db in range(4):
        for b in range(2):
            r = acc(db, b)
            for i in range(0, 16, 2):
                A(f"v_pk_mul_f32 {v(r + i, 2)}, {v(r + i, 2)}, {v(T0 + 2 * b, 2)} op_sel_hi:[1,0]")
            for i in range(8):
                A(f"v_cvt_pk_bf16_f32 {v(r + i)}, {v(r + 2 * i)}, {v(r + 2 * i + 1)}")
            for hf in range(2):
                A(f"ds_write_b128 {v(T0 + 4)}, {v(r + 4 * hf, 4)} offset:{((db * 2 + hf) * 2 + b) * 1024}")


def header(A, name):
    A(".p2align 8")
    A(f".globl {name}")
    A(f".type {name},@function")
    A.label(name)


def descriptor(A, name, nv, acc_off, ns=102):
    A(f".amdhsa_kernel {name}")
    A(f".amdhsa_next_free_vgpr {nv}")
    A(f".amdhsa_next_free_sgpr {ns}")
    A(f".amdhsa_accum_offset {acc_off}")
    A(".amdhsa_group_segment_fixed_size 0")
    A(".amdhsa_kernarg_size 96")
    A(".amdhsa_user_sgpr_count 2")
    A(".amdhsa_user_sgpr_kernarg_segment_ptr 1")
    A(".amdhsa_system_sgpr_workgroup_id_x 1")
    A(".amdhsa_float_denorm_mode_32 3")
    A(".end_amdhsa_kernel")


def main_kernel(A):
    header(A, "main_kernel")
    A("s_cmp_ge_u32 s2, 256")
    A("s_cbranch_scc1 M_END")
    A("s_load_dwordx16 s[4:19], s[0:1], 0")
    A("s_load_dwordx8 s[20:27], s[0:1], 64")
    if OPT["stamps"]:
        A("s_memrealtime s[98:99]")
    T = T0
    A(f"v_lshrrev_b32 {v(T)}, 6, v0")
    A(f"v_and_b32 {v(LANE)}, 63, v0")
    A(f"s_and_b32 {s(sG)}, s2, 7")
    A(f"v_readfirstlane_b32 {s(sW)}, {v(T)}")
    A(f"s_lshr_b32 {s(sP)}, s2, 3")
    A(f"v_lshlrev_b32 {v(LANE16)}, 4, {v(LANE)}")
    A(f"s_mul_i32 {s(sRB)}, {s(sW)}, {RPITCH}")
    A(f"s_add_u32 {s(sRB)}, {s(sRB)}, {RING}")
    A(f"v_and_b32 {v(T)}, 15, {v(LANE)}")
    A(f"v_lshrrev_b32 {v(T + 1)}, 4, {v(LANE)}")
    A(f"s_lshl_b32 {s(sT)}, {s(sW)}, 4")
    A(f"v_add_u32 {v(T + 2)}, {s(sT)}, {v(T)}")
    A(f"v_lshlrev_b32 {v(T + 2)}, 10, {v(T + 2)}")
    A(f"v_lshl_add_u32 {v(T + 2)}, {v(T + 1)}, 4, {v(T + 2)}")
    A(f"s_lshl_b32 {s(sT + 1)}, {s(sP)}, 16")
    A(f"v_lshrrev_b32 {v(T + 3)}, 3, {v(LANE)}")
    A(f"v_and_b32 {v(T + 4)}, 7, {v(LANE)}")
    A(f"v_lshrrev_b32 {v(T + 5)}, 2, {v(LANE)}")
    A(f"v_and_b32 {v(T + 5)}, 4, {v(T + 5)}")
    A(f"v_xor_b32 {v(T + 4)}, {v(T + 4)}, {v(T + 5)}")
    A(f"v_lshlrev_b32 {v(T + 4)}, 4, {v(T + 4)}")
    A(f"v_mul_u32_u24 {v(VOG0)}, 3584, {v(T + 3)}")
    A(f"v_add_u32 {v(VOG0)}, {v(VOG0)}, {v(T + 4)}")
    A(f"v_add_u32 {v(VOG1)}, {8 * 3584 - 1024}, {v(VOG0)}")
    A(f"v_lshl_add_u32 {v(VOQ0)}, {v(T + 3)}, 13, {v(T + 4)}")
    A(f"v_add_u32 {v(VOQ1)}, {8 * 8192 - 1024}, {v(VOQ0)}")
    A(f"v_lshl_add_u32 {v(VOO0)}, {v(T + 3)}, 10, {v(T + 4)}")
    A(f"v_add_u32 {v(VOO1)}, {8 * 1024 - 1024}, {v(VOO0)}")
    A("s_waitcnt lgkmcnt(0)")
    stamp(A, "start")
    srd(A, sX, pX, 2048 * 1024)
    XR = 128
    for i in range(16):
        A(f"buffer_load_dwordx4 {v(XR + 4 * i, 4)}, {v(T + 2)}, {s(sX, 4)}, {s(sT + 1)} offen offset:{64 * i}")
    srd(A, sWS, pWS, WS_SIZE)
    A(f"s_cmp_eq_u32 {s(sG)}, 7")
    A("s_cbranch_scc1 M_PRE_Q")
    A.lines += setw_gu()
    for j in range(6):
        emit_item(A, dma_w((j + 1) % 6, VOG0, VOG1))
    A("s_branch M_PRE_DONE")
    A.label("M_PRE_Q")
    srd(A, sWA, pWD, 1792 * 1024)
    srd(A, sWB, pWD, 1792 * 1024 + 2048 - 128, -2048 + 128)
    A(f"s_lshl_b32 {s(sOFF)}, {s(sP)}, 16")
    A(f"s_lshl_b32 {s(sT)}, {s(sW)}, 8")
    A(f"s_add_u32 {s(sOFF)}, {s(sOFF)}, {s(sT)}")
    A(f"s_mov_b32 {s(sSTEP)}, {16 * 1024}")
    for j in range(4):
        emit_item(A, dma_w(j, VOO0, VOO1))
    for j in range(2):
        emit_item(A, dma_w(4 + j, VOO0, VOO1))
    A.label("M_PRE_DONE")
    A(f"v_lshrrev_b32 {v(T + 1)}, 5, {v(LANE)}")
    A(f"v_bfe_u32 {v(T + 2)}, {v(LANE)}, 4, 1")
    A(f"v_lshrrev_b32 {v(T + 3)}, 2, {v(T)}")
    A(f"v_and_b32 {v(T + 4)}, 1, {v(T)}")
    A(f"v_bfe_u32 {v(T + 5)}, {v(T)}, 1, 1")
    A(f"v_lshl_add_u32 {v(T + 4)}, {v(T + 4)}, 1, {v(T + 5)}")
    A(f"v_lshlrev_b32 {v(T + 4)}, 3, {v(T + 4)}")
    A(f"v_lshl_add_u32 {v(T + 4)}, {v(T + 2)}, 5, {v(T + 4)}")
    A(f"v_lshl_add_u32 {v(T + 5)}, {v(T + 1)}, 3, {v(T + 3)}")
    A(f"v_lshl_add_u32 {v(T + 5)}, {v(T + 5)}, 7, {v(T + 4)}")
    A(f"v_add_u32 {v(T + 5)}, {s(sRB)}, {v(T + 5)}")
    A(f"v_lshrrev_b32 {v(T + 6)}, 1, {v(T + 3)}")
    A(f"v_lshl_add_u32 {v(WAD)}, {v(T + 6)}, 6, {v(T + 5)}")
    A(f"v_xor_b32 {v(T + 6)}, 1, {v(T + 6)}")
    A(f"v_lshl_add_u32 {v(WAD + 1)}, {v(T + 6)}, 6, {v(T + 5)}")
    A(f"v_mul_u32_u24 {v(T + 5)}, {RPITCH}, {v(T + 1)}")
    A(f"v_lshl_add_u32 {v(T + 5)}, {v(T + 3)}, 8, {v(T + 5)}")
    A(f"v_add_u32 {v(T + 5)}, {v(T + 5)}, {v(T + 4)}")
    A(f"v_add_u32 {v(T + 5)}, {RING + KVS * 4096}, {v(T + 5)}")
    for db in range(4):
        A(f"v_xor_b32 {v(T + 6)}, {db}, {v(T + 3)}")
        A(f"v_lshl_add_u32 {v(VAD + db)}, {v(T + 6)}, 6, {v(T + 5)}")
    A(f"v_and_b32 {v(T + 5)}, 0x13, {v(LANE)}")
    A(f"v_bfe_u32 {v(T + 6)}, {v(LANE)}, 2, 1")
    A(f"v_lshl_or_b32 {v(T + 5)}, {v(T + 6)}, 3, {v(T + 5)}")
    A(f"v_bfe_u32 {v(T + 6)}, {v(LANE)}, 3, 1")
    A(f"v_lshl_or_b32 {v(T + 5)}, {v(T + 6)}, 2, {v(T + 5)}")
    A(f"v_lshrrev_b32 {v(T + 6)}, 3, {v(T + 5)}")
    A(f"v_mul_u32_u24 {v(T + 6)}, {RPITCH}, {v(T + 6)}")
    A(f"v_and_b32 {v(T + 7)}, 7, {v(T + 5)}")
    A(f"v_lshl_add_u32 {v(T + 6)}, {v(T + 7)}, 8, {v(T + 6)}")
    A(f"v_add_u32 {v(T + 6)}, {RING + KVS * 4096}, {v(T + 6)}")
    A(f"v_and_b32 {v(T + 5)}, 15, {v(T + 5)}")
    A(f"v_xor_b32 {v(T + 5)}, {v(T + 5)}, {v(T + 1)}")
    for st in range(8):
        A(f"v_xor_b32 {v(T + 7)}, {2 * st}, {v(T + 5)}")
        A(f"v_lshl_add_u32 {v(KAD + st)}, {v(T + 7)}, 4, {v(T + 6)}")
    A(f"v_lshrrev_b32 {v(T + 5)}, 4, {v(LANE)}")
    A(f"s_lshl_b32 {s(sT)}, {s(sW)}, 11")
    A(f"v_lshl_add_u32 {v(T + 6)}, {v(T + 5)}, 8, {s(sT)}")
    A(f"v_lshlrev_b32 {v(T + 7)}, 2, {v(T + 5)}")
    A(f"v_xor_b32 {v(T + 7)}, {v(T + 7)}, {v(T)}")
    A(f"v_lshl_add_u32 {v(VOV0)}, {v(T + 7)}, 4, {v(T + 6)}")
    A(f"v_mov_b32 {v(VOV1)}, {v(VOV0)}")
    A(f"s_and_b32 {s(sT)}, {s(sW)}, 1")
    A(f"s_lshl_b32 {s(sT)}, {s(sT)}, 3")
    A(f"v_or_b32 {v(T + 7)}, {s(sT)}, {v(T + 5)}")
    A(f"v_xor_b32 {v(T + 7)}, {v(T + 7)}, {v(T)}")
    A(f"v_lshl_add_u32 {v(VOK0)}, {v(T + 7)}, 4, {v(T + 6)}")
    A(f"v_xor_b32 {v(T + 7)}, 4, {v(T + 7)}")
    A(f"v_lshl_add_u32 {v(VOK1)}, {v(T + 7)}, 4, {v(T + 6)}")
    A(f"s_lshl_b32 {s(sT)}, {s(sG)}, 19")
    A(f"s_add_u32 {s(sK)}, {s(pK)}, {s(sT)}")
    A(f"s_addc_u32 {s(sK + 1)}, {s(pK + 1)}, 0")
    A(f"s_mov_b32 {s(sK + 2)}, {524288}")
    A(f"s_mov_b32 {s(sK + 3)}, 0x20000")
    A(f"s_add_u32 {s(sV)}, {s(pV)}, {s(sT)}")
    A(f"s_addc_u32 {s(sV + 1)}, {s(pV + 1)}, 0")
    A(f"s_sub_u32 {s(sV)}, {s(sV)}, {8192 + 2048}")
    A(f"s_subb_u32 {s(sV + 1)}, {s(sV + 1)}, 0")
    A(f"s_mov_b32 {s(sV + 2)}, {524288 + 8192 + 2048}")
    A(f"s_mov_b32 {s(sV + 3)}, 0x20000")
    A(f"s_mov_b32 {s(sKV)}, 0")
    A(f"s_mov_b32 {s(sKVSTEP)}, 8192")
    A(f"v_lshlrev_b32 {v(T + 8)}, 11, {v(T + 1)}")
    A(f"v_lshl_add_u32 {v(T + 8)}, {v(T + 2)}, 9, {v(T + 8)}")
    A(f"v_lshl_add_u32 {v(T + 8)}, {v(T)}, 4, {v(T + 8)}")
    A(f"s_lshr_b32 {s(sT)}, {s(sW)}, 1")
    A(f"s_lshl_b32 {s(sT)}, {s(sT)}, 10")
    A(f"s_and_b32 {s(sT + 1)}, {s(sW)}, 1")
    A(f"s_lshl_b32 {s(sT + 1)}, {s(sT + 1)}, 8")
    A(f"s_add_u32 {s(sT)}, {s(sT)}, {s(sT + 1)}")
    A(f"v_add_u32 {v(T + 8)}, {s(sT)}, {v(T + 8)}")
    A(f"v_mov_b32 {v(BAD)}, {v(LANE16)}")
    SU, SQ = T + 10, T + 12
    A(f"s_mov_b32 {s(sT)}, 0xffff0000")
    for i in range(16):
        A(f"s_waitcnt vmcnt({24 + 15 - i})")
        for k in range(4):
            A(f"v_lshlrev_b32 {v(8 * i + 2 * k)}, 16, {v(XR + 4 * i + k)}")
            A(f"v_and_b32 {v(8 * i + 2 * k + 1)}, {s(sT)}, {v(XR + 4 * i + k)}")
        for k in range(4):
            r = v(8 * i + 2 * k, 2)
            if i == 0 and k == 0:
                A(f"v_pk_mul_f32 {v(SQ, 2)}, {r}, {r}")
                A(f"v_mov_b32 {v(SU)}, {v(0)}")
                A(f"v_mov_b32 {v(SU + 1)}, {v(1)}")
            else:
                A(f"v_pk_fma_f32 {v(SQ, 2)}, {r}, {r}, {v(SQ, 2)}")
                A(f"v_pk_add_f32 {v(SU, 2)}, {r}, {v(SU, 2)}")
    A(f"v_add_f32 {v(SU)}, {v(SU)}, {v(SU + 1)}")
    A(f"v_add_f32 {v(SQ)}, {v(SQ)}, {v(SQ + 1)}")
    for sw in ("v_permlane16_swap_b32", "v_permlane32_swap_b32"):
        A(f"v_mov_b32 {v(SU + 1)}, {v(SU)}")
        A(f"v_mov_b32 {v(SQ + 1)}, {v(SQ)}")
        A("s_nop 1")
        A(f"{sw} {v(SU + 1)}, {v(SU)}")
        A(f"{sw} {v(SQ + 1)}, {v(SQ)}")
        A(f"v_add_f32 {v(SU)}, {v(SU)}, {v(SU + 1)}")
        A(f"v_add_f32 {v(SQ)}, {v(SQ)}, {v(SQ + 1)}")
    A(f"v_mul_f32 {v(SU)}, {f32(1.0 / 512)}, {v(SU)}")
    A(f"v_mul_f32 {v(SQ)}, {f32(1.0 / 512)}, {v(SQ)}")
    A(f"v_fma_f32 {v(SQ)}, -{v(SU)}, {v(SU)}, {v(SQ)}")
    A(f"v_max_f32 {v(SQ)}, 0, {v(SQ)}")
    A(f"v_add_f32 {v(SQ)}, {f32(1e-5)}, {v(SQ)}")
    A(f"v_rsq_f32 {v(SQ)}, {v(SQ)}")
    A("s_nop 0")
    A(f"v_mul_f32 {v(SU)}, {v(SU)}, {v(SQ)}")
    A(f"v_sub_f32 {v(SU)}, 0, {v(SU)}")
    for i in range(16):
        for k in range(4):
            r = v(8 * i + 2 * k, 2)
            A(f"v_pk_fma_f32 {r}, {r}, {v(SQ, 2)}, {v(SU, 2)} op_sel_hi:[1,0,0]")
        for k in range(4):
            A(f"v_cvt_pk_bf16_f32 {v(8 * i + k)}, {v(8 * i + 2 * k)}, {v(8 * i + 2 * k + 1)}")
        A(f"ds_write_b128 {v(T + 8)}, {v(8 * i, 4)} offset:{4096 * i}")
    A(f"s_cmp_eq_u32 {s(sG)}, 7")
    A("s_cbranch_scc1 M_WD")
    A("s_waitcnt vmcnt(20) lgkmcnt(0)")
    A("s_barrier")
    stamp(A, "ln_done")
    for x in frag_reads(0, 1, 0):
        A(x)
    tail = [(setw_q(),) + dma_w((26 + 1) % 6, VOQ0, VOQ1)] + [dma_w((27 + j + 1) % 6, VOQ0, VOQ1) for j in range(5)]
    gemm_phase(A, "gu", 1, (VOG0, VOG1), tail, [16] * 6, frag_reads(0, 3, 0))
    A(f"s_mul_i32 {s(sT)}, {s(sP)}, {2 * 112 * 1024}")
    A(f"s_lshl_b32 {s(sT + 1)}, {s(sG)}, 14")
    A(f"s_add_u32 {s(sT)}, {s(sT)}, {s(sT + 1)}")
    A(f"s_lshl_b32 {s(sT + 1)}, {s(sW)}, 12")
    A(f"s_add_u32 {s(sT)}, {s(sT)}, {s(sT + 1)}")
    A(f"s_add_u32 {s(sT + 1)}, {s(sT)}, {112 * 1024}")
    A("s_nop 5")
    for nbb in range(2):
        for b in range(2):
            r, u = acc(nbb, b), acc(nbb + 2, b)
            for i in range(0, 16, 2):
                A(f"v_pk_mul_f32 {v(r + i, 2)}, {v(r + i, 2)}, {v(u + i, 2)}")
            d = S0 + 8 * (nbb * 2 + b)
            for i in range(8):
                A(f"v_cvt_pk_bf16_f32 {v(d + i)}, {v(r + 2 * i)}, {v(r + 2 * i + 1)}")
            for hf in range(2):
                A(f"buffer_store_dwordx4 {v(d + 4 * hf, 4)}, {v(LANE16)}, {s(sWS, 4)}, {s(sT + b)} offen offset:{(2 * nbb + hf) * 1024}")
    A("s_branch M_Q")
    A.label("M_WD")
    A("s_waitcnt vmcnt(0)")
    A(f"s_cmp_ge_u32 {s(sP)}, 28")
    A("s_cbranch_scc1 M_WD_DONE")
    A(f"s_mul_i32 {s(sT)}, {s(sW)}, {4 * 112 * 1024}")
    A(f"s_lshl_b32 {s(sT + 1)}, {s(sP)}, 12")
    A(f"s_add_u32 {s(sT)}, {s(sT)}, {s(sT + 1)}")
    A(f"s_add_u32 {s(sT)}, {s(sT)}, {WS_WD}")
    for j in range(4):
        for nb in range(4):
            for jj in range(2):
                A(f"ds_read_b64_tr_b16 {v(16 * j + 4 * nb + 2 * jj, 2)}, {v(WAD + nb % 2)} offset:{j * 4096 + (nb // 2) * 2048 + jj * 512}")
        A("s_waitcnt lgkmcnt(0)")
    for nb in range(4):
        for j in range(4):
            A(f"buffer_store_dwordx4 {v(16 * j + 4 * nb, 4)}, {v(LANE16)}, {s(sWS, 4)}, {s(sT)} offen offset:{j * 1024}")
        A(f"s_add_u32 {s(sT)}, {s(sT)}, {112 * 1024}")
    A.label("M_WD_DONE")
    A.lines += setw_q()
    for j in range(6):
        emit_item(A, dma_w((j + 3) % 6, VOQ0, VOQ1))
    A("s_waitcnt vmcnt(20) lgkmcnt(0)")
    A("s_barrier")
    for x in frag_reads(0, 3, 0):
        A(x)
    A.label("M_Q")
    stamp(A, "gu_done")
    tail = [dma_kv(5, konly=True), (setw_o(),) + dma_w(0, VOO0, VOO1), dma_w(1, VOO0, VOO1),
            dma_kv(KVS + 0), dma_kv(KVS + 1), dma_kv(KVS + 2)]
    gemm_phase(A, "q", 3, (VOQ0, VOQ1), tail, [16, 14, 14, 14, 14, None], None)
    stamp(A, "q_done")
    A("s_waitcnt vmcnt(20)")
    A("s_barrier")
    for st in range(8):
        A(kread(3, st))
    A(f"s_mov_b32 {s(sT)}, {f32(1.4426950408889634 * 128 ** -0.5)}")
    A(f"s_mov_b32 {s(sT + 1)}, {s(sT)}")
    A("s_nop 1")
    for b in range(2):
        for db in range(4):
            r = acc(db, b)
            for i in range(0, 16, 2):
                A(f"v_pk_mul_f32 {v(r + i, 2)}, {v(r + i, 2)}, {s(sT, 2)}")
            for i in range(8):
                A(f"v_cvt_pk_bf16_f32 {v(r + i)}, {v(r + 2 * i)}, {v(r + 2 * i + 1)}")
            for i in range(8):
                A(f"v_accvgpr_write_b32 {a(QF + (b * 8 + db * 2) * 4 + i)}, {v(r + i)}")
    for i in range(32):
        A(f"v_accvgpr_write_b32 {a(VF + i)}, 0")
    A("s_waitcnt lgkmcnt(0)")
    for b in range(2):
        for st in range(8):
            A(qk(b, st, "0"))
            if b == 0:
                A(f"v_mov_b32 {v(P1 + st)}, 0")
    for db in range(4):
        for b in range(2):
            A(mfma(v(acc(db, b), 16), a(VF, 4), v(P1, 4), "0"))
    A(f"v_mov_b32 {v(L0)}, 0")
    A(f"v_mov_b32 {v(L1)}, 0")
    rowmax(A, S0, T, T + 1)
    rowmax(A, S1, T + 2, T + 3)
    for i in range(16):
        A(f"v_sub_f32 {v(NM0 + i)}, 0, {v(T)}")
    for i in range(16):
        A(f"v_sub_f32 {v(NM1 + i)}, 0, {v(T + 2)}")
    for i in range(4, 16):
        A(f"v_mov_b32 {v(S1 + i)}, {f32(-1e30) if i > 5 else 0}")
    A(f"s_mov_b32 {s(sCNT)}, 16")
    stamp(A, "attn_start")
    A(".p2align 6")
    A.label("L_ATT")
    body = Asm()
    hook = {9: [f"s_cmp_eq_u32 {s(sCNT)}, 1", "s_cbranch_scc1 M_SWITCH", "M_SWITCH_RET:"]}
    attn_iter(body, 0, hook)
    for u in range(1, 4):
        attn_iter(body, u, {29: [f"s_sub_u32 {s(sCNT)}, {s(sCNT)}, 1"], 30: [f"s_cmp_lg_u32 {s(sCNT)}, 0"]} if u == 3 else None)
    A.lines += body.lines
    A("s_cbranch_scc1 L_ATT")
    for p in check_hazards(body.lines + body.lines, "attn loop"):
        print("HAZARD", p)
    for k in range(6, 17):
        for x in sm_ops(S1, P1, L1, k):
            A(x)
    A("s_nop 1")
    for f in range(8):
        A(pv(1, f))
    stamp(A, "attn_done")
    halfsum(A, L0, T)
    halfsum(A, L1, T + 1)
    A(f"v_add_f32 {v(T + 1)}, {v(L0)}, {v(L1)}")
    A(f"s_mov_b32 {s(sT)}, {f32(2.0 ** 64) if not OPT['force_slow'] else f32(-1.0)}")
    A(f"v_cmp_nge_f32 vcc, {s(sT)}, {v(T + 1)}")
    A(f"v_mov_b32 {v(T + 2)}, {s(sRB)}")
    A("s_nop 0")
    A(f"s_cmp_lg_u64 vcc, 0")
    A(f"s_cselect_b32 {s(sT + 1)}, 1, 0")
    A(f"v_mov_b32 {v(T + 3)}, {s(sT + 1)}")
    A(f"ds_write_b32 {v(T + 2)}, {v(T + 3)} offset:{5 * 4096}")
    o_to_lds(A)
    A(f"v_mov_b32 {v(BAD)}, {v(LANE16)}")
    A(f"v_and_b32 {v(T + 2)}, 3, {v(LANE)}")
    A(f"v_mul_u32_u24 {v(T + 2)}, {RPITCH}, {v(T + 2)}")
    A(f"v_add_u32 {v(T + 2)}, {RING}, {v(T + 2)}")
    A("s_waitcnt vmcnt(12) lgkmcnt(0)")
    A("s_barrier")
    A(f"ds_read_b32 {v(T + 3)}, {v(T + 2)} offset:{5 * 4096}")
    for x in frag_reads(0, 0, 0):
        A(x)
    A("s_waitcnt lgkmcnt(10)")
    A(f"v_cmp_ne_u32 vcc, 0, {v(T + 3)}")
    A("s_nop 0")
    A("s_cmp_lg_u64 vcc, 0")
    A("s_cbranch_scc1 M_SLOW")
    A("s_barrier")
    A.label("M_OPROJ")
    A(f"s_mov_b32 {s(sOFF)}, {s(sKV)}")
    emit_item(A, dma_w(5, VOO0, VOO1))
    stamp(A, "oproj_start")
    gemm_phase(A, "o", 0, (VOO0, VOO1), [None] * 6, [16, 12, 8, 4, 0, None], None)
    stamp(A, "oproj_done")
    A(f"s_lshl_b32 {s(sT)}, {s(sP)}, 19")
    A(f"s_lshl_b32 {s(sT + 1)}, {s(sW)}, 17")
    A(f"s_add_u32 {s(sT)}, {s(sT)}, {s(sT + 1)}")
    A(f"s_lshl_b32 {s(sT + 1)}, {s(sG)}, 13")
    A(f"s_add_u32 {s(sT)}, {s(sT)}, {s(sT + 1)}")
    A(f"s_add_u32 {s(sT)}, {s(sT)}, {WS_S}")
    A(f"s_add_u32 {s(sT + 1)}, {s(sT)}, 4096")
    A(f"s_add_u32 {s(sT + 2)}, {s(sT)}, 65536")
    A(f"s_add_u32 {s(sT + 3)}, {s(sT)}, {65536 + 4096}")
    A("s_nop 2")
    for nb in range(4):
        for b in range(2):
            r = acc(nb, b)
            for i in range(8):
                A(f"v_cvt_pk_bf16_f32 {v(r + i)}, {v(r + 2 * i)}, {v(r + 2 * i + 1)}")
            for hf in range(2):
                A(f"buffer_store_dwordx4 {v(r + 4 * hf, 4)}, {v(LANE16)}, {s(sWS, 4)}, {s(sT + nb)} offen offset:{(b * 2 + hf) * 1024}")
    if OPT["stamps"]:
        A("s_waitcnt vmcnt(0)")
        stamp(A, "end")
        A("s_memrealtime s[100:101]")
        A("s_waitcnt lgkmcnt(0)")
        n = STAMP_N[0]
        A(f"s_lshl_b32 {s(sT)}, s2, 2")
        A(f"s_add_u32 {s(sT)}, {s(sT)}, {s(sW)}")
        A(f"s_lshl_b32 {s(sT)}, {s(sT)}, 6")
        A(f"s_add_u32 {s(sT)}, {s(sT)}, {WS_DBG}")
        A(f"v_mov_b32 v1, 0")
        for i in range(n):
            A(f"s_sub_u32 {s(sT + 1)}, {s(80 + 2 * i)}, s80")
            A(f"v_mov_b32 v0, {s(sT + 1)}")
            A(f"buffer_store_dword v0, v1, {s(sWS, 4)}, {s(sT)} offen offset:{4 * i}")
            A("s_nop 1")
        A(f"s_sub_u32 {s(sT + 1)}, s100, s98")
        A(f"v_mov_b32 v0, {s(sT + 1)}")
        A(f"buffer_store_dword v0, v1, {s(sWS, 4)}, {s(sT)} offen offset:{4 * 14}")
        A("s_nop 1")
        A(f"v_mov_b32 v0, s98")
        A(f"buffer_store_dword v0, v1, {s(sWS, 4)}, {s(sT)} offen offset:{4 * 15}")
    A.label("M_END")
    A("s_endpgm")
    A.label("M_SWITCH")
    for i in range(4):
        A(f"s_mov_b32 {s(sK + i)}, {s(sWA + i)}")
        A(f"s_mov_b32 {s(sV + i)}, {s(sWB + i)}")
    A(f"s_mov_b32 {s(sK + 3)}, 0x20000")
    A(f"s_mov_b32 {s(sV + 3)}, 0x20000")
    A(f"s_mov_b32 {s(sKV)}, {s(sOFF)}")
    A(f"s_mov_b32 {s(sKVSTEP)}, {s(sSTEP)}")
    A(f"v_mov_b32 {v(T + 10)}, {v(VOK0)}")
    A(f"v_mov_b32 {v(T + 11)}, {v(VOK1)}")
    A(f"v_mov_b32 {v(T + 12)}, {v(VOV0)}")
    A(f"v_mov_b32 {v(VOK0)}, {v(VOO0)}")
    A(f"v_mov_b32 {v(VOK1)}, {v(VOO1)}")
    A(f"v_mov_b32 {v(VOV0)}, {v(VOO0)}")
    A(f"v_mov_b32 {v(VOV1)}, {v(VOO1)}")
    A("s_branch M_SWITCH_RET")
    A.label("M_SLOW")
    slow_path(A)
    A("s_branch M_OPROJ")


def slow_path(A):
    T = T0
    M0r, M1r = T + 14, T + 15
    A("s_waitcnt vmcnt(0) lgkmcnt(0)")
    A(f"s_lshl_b32 {s(sT)}, {s(sG)}, 19")
    A(f"s_add_u32 {s(sX)}, {s(pK)}, {s(sT)}")
    A(f"s_addc_u32 {s(sX + 1)}, {s(pK + 1)}, 0")
    A(f"s_mov_b32 {s(sX + 2)}, {524288}")
    A(f"s_mov_b32 {s(sX + 3)}, 0x20000")
    sV2 = 72
    A(f"s_add_u32 {s(sV2)}, {s(pV)}, {s(sT)}")
    A(f"s_addc_u32 {s(sV2 + 1)}, {s(pV + 1)}, 0")
    A(f"s_sub_u32 {s(sV2)}, {s(sV2)}, 2048")
    A(f"s_subb_u32 {s(sV2 + 1)}, {s(sV2 + 1)}, 0")
    A(f"s_mov_b32 {s(sV2 + 2)}, {524288 + 2048}")
    A(f"s_mov_b32 {s(sV2 + 3)}, 0x20000")
    for i in range(128):
        A(f"v_mov_b32 {v(i)}, 0")
    A(f"v_mov_b32 {v(L0)}, 0")
    A(f"v_mov_b32 {v(L1)}, 0")
    A(f"v_mov_b32 {v(M0r)}, 0xff800000")
    A(f"v_mov_b32 {v(M1r)}, 0xff800000")
    A(f"s_mov_b32 {s(sT + 2)}, 0")
    A(f"s_add_u32 m0, {s(sRB)}, {5 * 4096}")
    A.label("L_SLOW")
    A("s_barrier")
    A(f"buffer_load_dwordx4 {v(T + 10)}, {s(sX, 4)}, {s(sT + 2)} offen lds")
    A(f"buffer_load_dwordx4 {v(T + 11)}, {s(sX, 4)}, {s(sT + 2)} offen offset:1024 lds")
    A(f"buffer_load_dwordx4 {v(T + 12)}, {s(sV2, 4)}, {s(sT + 2)} offen offset:2048 lds")
    A(f"buffer_load_dwordx4 {v(T + 12)}, {s(sV2, 4)}, {s(sT + 2)} offen offset:3072 lds")
    A("s_waitcnt vmcnt(0)")
    A("s_barrier")
    for st in range(8):
        A(kread(3, st))
    A("s_waitcnt lgkmcnt(0)")
    for j in range(16):
        A(vread(3, j))
        if j == 7:
            A("s_waitcnt lgkmcnt(0)")
    for b in range(2):
        for st in range(8):
            A(qk(b, st, "0"))
    A("s_nop 15")
    for b, (Sx, Px, Lx, Mx) in enumerate(((S0, P0, L0, M0r), (S1, P1, L1, M1r))):
        rowmax(A, Sx, T, T + 1)
        A(f"v_max_f32 {v(T)}, {v(T)}, {v(Mx)}")
        A(f"v_sub_f32 {v(T + 2)}, {v(Mx)}, {v(T)}")
        A(f"v_exp_f32 {v(T + 2)}, {v(T + 2)}")
        A(f"v_mov_b32 {v(Mx)}, {v(T)}")
        A(f"v_mul_f32 {v(Lx)}, {v(Lx)}, {v(T + 2)}")
        for db in range(4):
            for i in range(0, 16, 2):
                r = v(acc(db, b) + i, 2)
                A(f"v_pk_mul_f32 {r}, {r}, {v(T + 2, 2)} op_sel_hi:[1,0]")
        for i in range(16):
            A(f"v_sub_f32 {v(Sx + i)}, {v(Sx + i)}, {v(T)}")
        for k in range(17):
            o = sm_ops(Sx, Px, Lx, k)
            for x in o:
                A(x)
    A("s_waitcnt lgkmcnt(0)")
    A("s_nop 1")
    for b in range(2):
        for f in range(8):
            A(pv(b, f))
    A(f"s_add_u32 {s(sT + 2)}, {s(sT + 2)}, 8192")
    A("s_nop 15")
    A(f"s_cmp_lt_u32 {s(sT + 2)}, {524288}")
    A("s_cbranch_scc1 L_SLOW")
    halfsum(A, L0, T)
    halfsum(A, L1, T + 1)
    A("s_barrier")
    o_to_lds(A)
    A("s_waitcnt lgkmcnt(0)")
    A("s_barrier")
    for x in frag_reads(0, 0, 0):
        A(x)


def final_kernel(A):
    header(A, "final_kernel")
    A("s_cmp_ge_u32 s2, 256")
    A("s_cbranch_scc1 F_END")
    A("s_load_dwordx2 s[4:5], s[0:1], 0")
    A("s_load_dwordx2 s[6:7], s[0:1], 72")
    A("s_load_dwordx2 s[8:9], s[0:1], 88")
    fW, fP, fC, fT = 12, 13, 14, 16
    rWS, rX, rO = 24, 28, 32
    YA = 0
    SP = 64
    XR = 128
    LN16, TT = 136, 138
    A(f"v_lshrrev_b32 {v(TT)}, 6, v0")
    A(f"v_and_b32 {v(TT + 1)}, 63, v0")
    A(f"s_and_b32 {s(fP)}, s2, 7")
    A(f"v_readfirstlane_b32 {s(fW)}, {v(TT)}")
    A(f"s_lshl_b32 {s(fP)}, {s(fP)}, 2")
    A(f"s_lshr_b32 {s(fT)}, s2, 6")
    A(f"s_add_u32 {s(fP)}, {s(fP)}, {s(fT)}")
    A(f"s_bfe_u32 {s(fC)}, s2, 0x30003")
    A(f"v_lshlrev_b32 {v(LN16)}, 4, {v(TT + 1)}")
    A(f"s_mul_i32 {s(fT)}, {s(fW)}, {28 * 1024}")
    A(f"s_mul_i32 {s(fT + 1)}, {s(fP)}, {2 * 112 * 1024}")
    A(f"s_add_u32 {s(fT + 1)}, {s(fT + 1)}, {s(fT)}")
    A(f"s_add_u32 {s(fT + 2)}, {s(fT + 1)}, {112 * 1024}")
    A(f"s_mul_i32 {s(fT + 3)}, {s(fC)}, {2 * 112 * 1024}")
    A(f"s_add_u32 {s(fT + 3)}, {s(fT + 3)}, {s(fT)}")
    A(f"s_add_u32 {s(fT + 3)}, {s(fT + 3)}, {WS_WD}")
    A(f"s_add_u32 {s(fT + 4)}, {s(fT + 3)}, {112 * 1024}")
    A(f"s_lshl_b32 {s(fT + 5)}, {s(fP)}, 3")
    A(f"s_add_u32 {s(fT + 5)}, {s(fT + 5)}, {s(fC)}")
    A(f"s_lshl_b32 {s(fT + 5)}, {s(fT + 5)}, 16")
    A(f"s_lshl_b32 {s(fT)}, {s(fW)}, 11")
    A(f"s_add_u32 {s(fT + 5)}, {s(fT + 5)}, {s(fT)}")
    A(f"s_add_u32 {s(fT + 5)}, {s(fT + 5)}, {WS_S}")
    A(f"v_and_b32 {v(TT)}, 31, {v(TT + 1)}")
    A(f"v_lshrrev_b32 {v(TT + 2)}, 5, {v(TT + 1)}")
    A(f"v_lshlrev_b32 {v(TT)}, 10, {v(TT)}")
    A(f"v_lshl_add_u32 {v(TT)}, {v(TT + 2)}, 4, {v(TT)}")
    A(f"s_lshl_b32 {s(fT + 6)}, {s(fP)}, 16")
    A(f"s_and_b32 {s(fT)}, {s(fW)}, 1")
    A(f"s_lshl_b32 {s(fT)}, {s(fT)}, 15")
    A(f"s_add_u32 {s(fT + 6)}, {s(fT + 6)}, {s(fT)}")
    A(f"s_lshl_b32 {s(fT)}, {s(fC)}, 7")
    A(f"s_add_u32 {s(fT + 6)}, {s(fT + 6)}, {s(fT)}")
    A(f"s_lshr_b32 {s(fT)}, {s(fW)}, 1")
    A(f"s_lshl_b32 {s(fT)}, {s(fT)}, 6")
    A(f"s_add_u32 {s(fT + 6)}, {s(fT + 6)}, {s(fT)}")
    A("s_waitcnt lgkmcnt(0)")
    srd(A, rWS, 8, WS_SIZE)
    srd(A, rX, 4, 2048 * 1024)
    srd(A, rO, 6, 2048 * 1024)
    NBUF = 11

    def loads(k):
        base = 16 * (k % NBUF)
        o = []
        for i in range(4):
            o.append(f"buffer_load_dwordx4 {a(base + 4 * i, 4)}, {v(LN16)}, {s(rWS, 4)}, {s(fT + (3, 4, 1, 2)[i])} offen offset:{(k % 4) * 1024}")
        if k % 4 == 3:
            for i in range(1, 5):
                o.append(f"s_add_u32 {s(fT + i)}, {s(fT + i)}, 4096")
        return o
    for k in range(NBUF):
        for x in loads(k):
            A(x)
    for g in range(8):
        for hf in range(2):
            A(f"buffer_load_dwordx4 {v(SP + g * 8 + hf * 4, 4)}, {v(LN16)}, {s(rWS, 4)}, {s(fT + 5)} offen offset:{hf * 1024}")
        A(f"s_add_u32 {s(fT + 5)}, {s(fT + 5)}, 8192")
    for hf in range(2):
        A(f"buffer_load_dwordx4 {v(XR + hf * 4, 4)}, {v(TT)}, {s(rX, 4)}, {s(fT + 6)} offen offset:{hf * 32}")
    order = [("k", k) for k in range(NBUF) for _ in range(4)] + [("s", 0)] * 18
    for k in range(28):
        idx = max(i for i, o in enumerate(order) if o == ("k", k))
        A(f"s_waitcnt vmcnt({len(order) - 1 - idx})")
        base = 16 * (k % NBUF)
        for nb in range(2):
            for b in range(2):
                r = v(YA + 16 * (nb * 2 + b), 16)
                A(mfma(r, a(base + 4 * nb, 4), a(base + 8 + 4 * b, 4), "0" if k == 0 else r))
        if k + NBUF < 28:
            for x in loads(k + NBUF):
                A(x)
            order += [("k", k + NBUF)] * 4
    SS = 144
    A(f"s_mov_b32 {s(fT)}, 0xffff0000")
    A("s_waitcnt vmcnt(0)")
    for g in range(8):
        for i in range(8):
            r = SP + g * 8 + i
            if g == 0:
                A(f"v_lshlrev_b32 {v(SS + 2 * i)}, 16, {v(r)}")
                A(f"v_and_b32 {v(SS + 2 * i + 1)}, {s(fT)}, {v(r)}")
            else:
                t = 160 + 2 * (i % 4)
                A(f"v_lshlrev_b32 {v(t)}, 16, {v(r)}")
                A(f"v_and_b32 {v(t + 1)}, {s(fT)}, {v(r)}")
                A(f"v_pk_add_f32 {v(SS + 2 * i, 2)}, {v(SS + 2 * i, 2)}, {v(t, 2)}")
        if g == 0:
            A(f"s_lshl_b32 {s(fT + 1)}, {s(fW)}, 12")
            A(f"v_add_u32 {v(TT + 2)}, {s(fT + 1)}, {v(LN16)}")
            for blk in range(4):
                for q in range(4):
                    A(f"ds_write_b128 {v(TT + 2)}, {v(YA + 16 * blk + 4 * q, 4)} offset:{blk * 16384 + q * 1024}")
    A(f"s_lshl_b32 {s(fT + 1)}, {s(fW)}, 14")
    A(f"v_add_u32 {v(TT + 2)}, {s(fT + 1)}, {v(LN16)}")
    A("s_waitcnt lgkmcnt(0)")
    A("s_barrier")
    for u in range(4):
        for q in range(4):
            A(f"ds_read_b128 {v(YA + 16 * u + 4 * q, 4)}, {v(TT + 2)} offset:{u * 4096 + q * 1024}")
        if u == 2:
            A("s_waitcnt lgkmcnt(4)")
            for i in range(0, 16, 2):
                A(f"v_pk_add_f32 {v(YA + i, 2)}, {v(YA + i, 2)}, {v(YA + 16 + i, 2)}")
    A("s_waitcnt lgkmcnt(0)")
    for i in range(0, 16, 2):
        A(f"v_pk_add_f32 {v(YA + 32 + i, 2)}, {v(YA + 32 + i, 2)}, {v(YA + 48 + i, 2)}")
    for i in range(0, 16, 2):
        A(f"v_pk_add_f32 {v(YA + i, 2)}, {v(YA + i, 2)}, {v(YA + 32 + i, 2)}")
    E = 16
    for i in range(16):
        A(f"v_mul_f32 {v(E + i)}, {f32(-1.4426950408889634)}, {v(YA + i)}")
    for i in range(16):
        A(f"v_exp_f32 {v(E + i)}, {v(E + i)}")
    for i in range(16):
        A(f"v_add_f32 {v(E + i)}, 1.0, {v(E + i)}")
    for i in range(16):
        A(f"v_rcp_f32 {v(E + i)}, {v(E + i)}")
    for i in range(8):
        A(f"v_lshlrev_b32 {v(32 + 2 * i)}, 16, {v(XR + i)}")
        A(f"v_and_b32 {v(32 + 2 * i + 1)}, {s(fT)}, {v(XR + i)}")
    for i in range(0, 16, 2):
        A(f"v_pk_mul_f32 {v(E + i, 2)}, {v(E + i, 2)}, {v(YA + i, 2)}")
    for i in range(0, 16, 2):
        A(f"v_pk_fma_f32 {v(E + i, 2)}, {v(E + i, 2)}, {v(SS + i, 2)}, {v(32 + i, 2)}")
    for i in range(8):
        A(f"v_cvt_pk_bf16_f32 {v(48 + i)}, {v(E + 2 * i)}, {v(E + 2 * i + 1)}")
    for hf in range(2):
        A(f"buffer_store_dwordx4 {v(48 + hf * 4, 4)}, {v(TT)}, {s(rO, 4)}, {s(fT + 6)} offen offset:{hf * 32}")
    A.label("F_END")
    A("s_endpgm")


def generate(**opt):
    OPT.update(opt)
    STAMP_N[0] = 0
    A = Asm()
    A.lines.append("; @launch kernel=main_kernel grid=(256,1,1) block=(256,1,1) lds=163840")
    A.lines.append("; @launch kernel=final_kernel grid=(256,1,1) block=(256,1,1) lds=65536")
    A('.amdgcn_target "amdgcn-amd-amdhsa--gfx950"')
    A(".text")
    M = Asm()
    main_kernel(M)
    F = Asm()
    final_kernel(F)
    for nm, X in (("main", M), ("final", F)):
        for p in check_hazards(X.lines, nm):
            print("HAZARD", p)
    A.lines += M.lines + F.lines
    A(".p2align 8")
    A(".fill 64, 4, 0xbf800000")
    A('.section .rodata,"a"')
    A(".p2align 6")
    descriptor(A, "main_kernel", 256 + 176, 256)
    A(".p2align 6")
    descriptor(A, "final_kernel", 256 + 176, 256)
    return A.text()


if __name__ == "__main__":
    out = sys.argv[1] if len(sys.argv) > 1 else f"cdna_kernels/{NAME}.s"
    opt = {}
    for x in sys.argv[2:]:
        k, val = x.split("=")
        opt[k] = int(val)
    open(out, "w").write(generate(**opt))
    print("wrote", out)
```

```python
import sys, os, struct
sys.path.insert(0, os.path.dirname(os.path.abspath(__file__)))
from asmlib import Asm, v, a, s, check_hazards

NAME = "recurrent_scan__gqa_block_cached__glu_gated_bilinear__prompt"
KERNEL = NAME + "_kernel"
OPT = dict(stamps=0, force_slow=0, warm=1, st_flag="sc1", lg=0, warmq=1, nostamp="", poll_at=7, check_at=9, warmy=1)

WS_H = 0
WS_H_SZ = 32 * 56 * 4 * 1024
WS_WD = 8 << 20
WS_S = 16 << 20
WS_FLAG = 48 << 20
WS_DBG = 64 << 20
WS_SIZE = 268435456

RING = 65536
RPITCH = 24576
KVS = 2


def f32(x):
    return "0x%08x" % struct.unpack("<I", struct.pack("<f", x))[0]


ACC = 0
SR, NM, PR, LS, ONE = 128, 160, 176, 192, 208
KAD = 212
VAD = 216
VOK0, VOK1, VOV0, VOV1 = 224, 225, 226, 227
VOG0, VOG1, VOQ0, VOQ1, VOO0, VOO1 = 228, 229, 230, 231, 232, 233
WAG, WAQ, WAO = 234, 238, 240
BAD, LANE16, LANE = 244, 245, 246
SAVE = 247
DUMMY = 251
QF, KF, VF = 0, 64, 96
WF, BF = 128, 160
NAGPR = 208

sX, sWA, sWB, sK, sV, sWS = 28, 32, 36, 40, 44, 48
sW, sG, sP, sRB = 52, 53, 54, 55
sOFF, sOFF2, sSTEP, sCNT, sKV, sKVSTEP, sKVX, sU = 56, 57, 58, 59, 60, 61, 62, 63
sT = 64
sDBG, sFP, sFC, sTRIG, sY = 80, 84, 85, 86, 87
SPIN = 1 << 17
pX, pK, pV, pWQ, pWO, pWG, pWU, pWD, pOUT, pDBG, pWS = 4, 6, 8, 10, 12, 16, 18, 20, 22, 24, 26


def srd(A, d, ptr, size, bias=0):
    if bias == 0:
        A(f"s_mov_b32 {s(d)}, {s(ptr)}")
        A(f"s_mov_b32 {s(d+1)}, {s(ptr+1)}")
    elif bias > 0:
        A(f"s_add_u32 {s(d)}, {s(ptr)}, {bias}")
        A(f"s_addc_u32 {s(d+1)}, {s(ptr+1)}, 0")
    else:
        A(f"s_sub_u32 {s(d)}, {s(ptr)}, {-bias}")
        A(f"s_subb_u32 {s(d+1)}, {s(ptr+1)}, 0")
    A(f"s_mov_b32 {s(d+2)}, {size}")
    A(f"s_mov_b32 {s(d+3)}, 0x20000")


def mfma(d, A_, B_, c):
    return f"v_mfma_f32_16x16x32_bf16 {d}, {A_}, {B_}, {c}"


def mfma32(d, A_, B_, c):
    return f"v_mfma_f32_32x32x16_bf16 {d}, {A_}, {B_}, {c}"


def acc(nb, qb):
    return ACC + 4 * (nb * 4 + qb)


def S(qb, kb=0):
    return SR + 8 * qb + 4 * kb


STAMP_N = [0]
STAMP_NAMES = []


def stamp(A, name, rc=254):
    if not OPT["stamps"] or name in OPT["nostamp"].split():
        return
    if name not in STAMP_NAMES:
        STAMP_NAMES.append(name)
    i = STAMP_NAMES.index(name)
    A(f"s_memtime s[96:97]")
    A("s_memrealtime s[98:99]")
    A("s_waitcnt lgkmcnt(0)")
    A(f"v_writelane_b32 {v(rc)}, s96, {i}")
    A(f"v_writelane_b32 {v(rc + 1)}, s98, {i}")


def stamp_out(A, srd_, wreg, base, lane4, rc=254):
    A("s_lshl_b32 s96, s2, 2")
    A(f"s_add_u32 s96, s96, {s(wreg)}")
    A("s_lshl_b32 s96, s96, 7")
    A(f"s_add_u32 s96, s96, {base}")
    A("s_mov_b64 exec, 0xffff")
    A(f"v_lshrrev_b32 {v(lane4)}, 2, {v(lane4)}")
    A(f"buffer_store_dword {v(rc)}, {v(lane4)}, {s(srd_, 4)}, s96 offen")
    A(f"buffer_store_dword {v(rc + 1)}, {v(lane4)}, {s(srd_, 4)}, s96 offen offset:64")


def dma_w(slot, X, vo):
    r = s((sWA, sWB)[X], 4)
    pre = [f"s_add_u32 m0, {s(sRB)}, {slot * 4096}"]
    d = [f"buffer_load_dwordx4 {v(vo[0])}, {r}, {s(sOFF)} offen lds",
         f"buffer_load_dwordx4 {v(vo[1])}, {r}, {s(sOFF)} offen offset:1024 lds",
         f"buffer_load_dwordx4 {v(vo[0])}, {r}, {s(sOFF2)} offen offset:2048 lds",
         f"buffer_load_dwordx4 {v(vo[1])}, {r}, {s(sOFF2)} offen offset:3072 lds"]
    post = [f"s_add_u32 {s(sOFF)}, {s(sOFF)}, {s(sSTEP)}", f"s_add_u32 {s(sOFF2)}, {s(sOFF2)}, {s(sSTEP)}"] if X else []
    return pre, d, post


def dma_kv(slot, konly=False):
    pre = [f"s_add_u32 m0, {s(sRB)}, {slot * 4096}"]
    d = [f"buffer_load_dwordx4 {v(VOK0)}, {s(sK, 4)}, {s(sKV)} offen lds",
         f"buffer_load_dwordx4 {v(VOK1)}, {s(sK, 4)}, {s(sKV)} offen offset:1024 lds"]
    if not konly:
        d += [f"buffer_load_dwordx4 {v(VOV0)}, {s(sV, 4)}, {s(sKV)} offen offset:2048 lds",
              f"buffer_load_dwordx4 {v(VOV1)}, {s(sV, 4)}, {s(sKV)} offen offset:3072 lds"]
    post = [f"s_add_u32 {s(sKV)}, {s(sKV)}, {s(sKVSTEP)}"]
    return pre, d, post


def emit_item(A, item):
    pre, d, post = item
    for x in pre:
        A(x)
    A("s_nop 0")
    for x in d + post:
        A(x)


def setw(pa, pb, size, bbias, pitch, shg, shw, greg=None):
    A = Asm()
    srd(A, sWA, pa, size)
    srd(A, sWB, pb, size - bbias, bbias)
    A(f"s_lshl_b32 {s(sOFF)}, {s(sG if greg is None else greg)}, {shg}")
    A(f"s_lshl_b32 {s(sT)}, {s(sW)}, {shw}")
    A(f"s_add_u32 {s(sOFF)}, {s(sOFF)}, {s(sT)}")
    A(f"s_add_u32 {s(sOFF2)}, {s(sOFF)}, {16 * pitch - 2048}")
    A(f"s_mov_b32 {s(sSTEP)}, {32 * pitch}")
    return A.lines


setw_gu = lambda: setw(pWG, pWU, 512 * 3584, 0, 3584, 9, 7)
setw_q = lambda: setw(pWQ, pWQ, 512 * 8192, 128, 8192, 10, 8)
setw_o = lambda: setw(pWO, pWO, 4096 * 1024, 128, 1024, 19, 8)
setw_d = lambda: setw(pWD, pWD, 1792 * 1024, 128, 1024, 16, 8, greg=sP)
VO_G, VO_Q, VO_O = (VOG0, VOG1), (VOQ0, VOQ1), (VOO0, VOO1)


def w_reads(kind, slot, dst):
    r = []
    for nbl in range(4):
        for jj in range(2):
            if kind == "g":
                ad, off = WAG + (nbl ^ (2 * jj)), jj * 512
            elif kind == "q":
                ad, off = WAQ + ((nbl // 2) ^ jj), jj * 512 + 8 * (nbl % 2)
            else:
                ad, off = WAO + nbl, jj * 2048
            r.append(f"ds_read_b64_tr_b16 {dst(nbl, jj)}, {v(ad)} offset:{slot * 4096 + off}")
    return r


def wdst(par):
    return lambda nbl, jj: a(WF + par * 16 + nbl * 4 + jj * 2, 2)


def b_reads(buf, off, qbs):
    return [f"ds_read_b128 {a(BF + buf * 16 + qb * 4, 4)}, {v(BAD)} offset:{off + qb * 1024}" for qb in qbs]


def first_reads(kind, slot, buf):
    return b_reads(buf, 0, range(4)) + w_reads(kind, slot, wdst(0))


def gemm_step(A, hs, bbuf, first, reads, item, vm, extra=()):
    A(f"s_waitcnt vmcnt({vm}) lgkmcnt(0)" if vm is not None else "s_waitcnt lgkmcnt(0)")
    par, X = hs % 2, hs % 2
    fill = [[] for _ in range(16)]
    reads = reads or []
    for i, r in enumerate(reads):
        fill[i].append(r)
    if item is not None:
        pre, d, post = item
        fill[11] = pre + fill[11]
        for i, x in enumerate(d):
            fill[12 + i].append(x)
        fill[15] += post
    k = 10
    for x in extra:
        fill[k].append(x)
        if x.startswith("buffer_"):
            k = min(15, k + 1)
    k = 0
    for nbl in range(4):
        for qb in range(4):
            r = v(acc(4 * X + nbl, qb), 4)
            A(mfma(r, a(WF + par * 16 + nbl * 4, 4), a(BF + bbuf * 16 + qb * 4, 4), "0" if first else r))
            for x in fill[k]:
                A(x)
            k += 1


def gemm_phase(A, tag, kind, c, b0, vo, tail_items, tail_vm, last_reads, tail_extra=None):
    A.comment(f"---- gemm {tag}")
    slot = lambda j: (j + c) % 6

    def reads(hs, jbase):
        J = hs // 2
        r = w_reads(kind, slot(hs + 1), wdst((hs + 1) % 2))
        if J < 15:
            qbs = (0, 1) if hs % 2 == 0 else (2, 3)
            r = r + b_reads((J + 1 + b0) % 3, (J + 1 - jbase) * 4096, qbs)
        return r
    for hs in range(2):
        gemm_step(A, hs, b0 % 3, True, reads(hs, 0), dma_w(slot(hs), hs % 2, vo), 16)
    stamp(A, tag + "h")
    A(f"s_mov_b32 {s(sCNT)}, 4")
    A.label(f"L_{tag}")
    body = Asm()
    for u in range(6):
        hs = 2 + u
        gemm_step(body, hs, (hs // 2 + b0) % 3, False, reads(hs, 0), dma_w(slot(hs), hs % 2, vo), 16)
    body(f"s_sub_u32 {s(sCNT)}, {s(sCNT)}, 1")
    body(f"v_add_u32 {v(BAD)}, {3 * 4096}, {v(BAD)}")
    body(f"s_cmp_lg_u32 {s(sCNT)}, 0")
    A.lines += body.lines
    A(f"s_cbranch_scc1 L_{tag}")
    for p in check_hazards(body.lines + body.lines, f"loop {tag}"):
        print("HAZARD", p)
    stamp(A, tag + "l")
    for u in range(6):
        hs = 26 + u
        if hs < 31:
            rd = reads(hs, 12)
        else:
            rd = last_reads
            if rd:
                A(f"v_mov_b32 {v(BAD)}, {v(LANE16)}")
        it = tail_items[u]
        if isinstance(it, tuple) and len(it) == 4:
            for x in it[0]:
                A(x)
            it = it[1:]
        gemm_step(A, hs, (hs // 2 + b0) % 3, False, rd, it, tail_vm[u], tail_extra[u] if tail_extra else ())


def kread(sl, f):
    kb, ds = f // 4, f % 4
    return f"ds_read_b128 {a(KF + 4 * f, 4)}, {v(KAD + ds)} offset:{kb * 49152 + sl * 4096}"


def vread(sl, j):
    db, jj = j // 2, j % 2
    return f"ds_read_b64_tr_b16 {a(VF + 4 * db + 2 * jj, 2)}, {v(VAD + db)} offset:{jj * 49152 + sl * 4096 + 2048}"


def qk(qb, kb, ds, c):
    r = v(S(qb, kb), 4)
    return mfma(r, a(KF + 4 * (kb * 4 + ds), 4), a(QF + (qb * 4 + ds) * 4, 4), c if ds == 0 else r)


def pv(qb, db):
    r = v(acc(db, qb), 4)
    return mfma(r, a(VF + 4 * db, 4), v(PR + 4 * qb, 4), r)


def rsum(qb):
    r = v(LS + 4 * qb, 4)
    return mfma(r, v(ONE, 4), v(PR + 4 * qb, 4), r)


def ex(qb, e):
    return f"v_exp_f32 {v(S(qb) + e)}, {v(S(qb) + e)}"


def cv(qb, j):
    return f"v_cvt_pk_bf16_f32 {v(PR + 4 * qb + j)}, {v(S(qb) + 2 * j)}, {v(S(qb) + 2 * j + 1)}"


def attn_iter(A, u, hook=None):
    m = {}
    order = []
    for half in range(2):
        base = 32 * half
        k = base
        for qb in (2 * half, 2 * half + 1):
            for kb in range(2):
                for ds in range(4):
                    m[k] = qk(qb, kb, ds, v(NM + 4 * qb, 4))
                    order.append(k)
                    k += 1
        oq = 2 * (1 - half)
        for db in range(8):
            for qb in (oq, oq + 1):
                m[k] = pv(qb, db)
                order.append(k)
                k += 1
        for i, key in enumerate(("ab", "cd")[half]):
            m[key] = rsum(oq + i)
            order.append(key)
    sal = {k: [] for k in order}
    mem = {k: [] for k in order}
    val = {k: [] for k in order}
    for qb in range(4):
        w0 = 11 + 16 * qb
        for e in range(8):
            val[(w0 + 2 * e) % 64].append(ex(qb, e))
            if e % 2:
                val[(w0 + 2 * e + 1) % 64].append(cv(qb, e // 2))
    vs = [18, 20, 22, 24, 26, 28, 30, "a", "b", 32, 34, 36, 38, 40, 42, 44]
    for j, sl in enumerate(vs):
        mem[sl].append(vread(u, j))
    for f in range(8):
        mem[46 + 2 * f].append(kread(u, f))
    sal[47].append("s_waitcnt lgkmcnt(9)")
    sal[55].append("s_waitcnt lgkmcnt(5)")
    sal["d"].append("s_waitcnt lgkmcnt(4)")
    sal[1].append("s_waitcnt vmcnt(8) lgkmcnt(0)")
    sal[2].append("s_barrier")
    dpre, d, dpost = dma_kv(KVS + (u - 1) % 4)
    sal[3] += dpre
    for i, x in enumerate(d):
        mem[4 + 4 * i].append(x)
    sal[17] += dpost
    sal[19].append(f"s_xor_b32 {s(sKVSTEP)}, {s(sKVSTEP)}, {s(sKVX)}")
    for k, xs in (hook or {}).items():
        sal[k] += xs
    for k in order:
        A(m[k])
        for x in sal[k] + mem[k] + val[k]:
            A(x) if not x.endswith(":") else A.label(x[:-1])


def xlane(A, op, regs, tmps):
    for sw in ("v_permlane16_swap_b32", "v_permlane32_swap_b32"):
        for r, t in zip(regs, tmps):
            A(f"v_mov_b32 {v(t)}, {v(r)}")
        if len(regs) < 3:
            A("s_nop 1")
        for r, t in zip(regs, tmps):
            A(f"{sw} {v(t)}, {v(r)}")
        for r, t in zip(regs, tmps):
            A(f"{op} {v(r)}, {v(r)}, {v(t)}")


def rowmax(A, dst, tmp):
    for qb in range(4):
        A(f"v_max3_f32 {v(dst + qb)}, {v(S(qb))}, {v(S(qb) + 1)}, {v(S(qb) + 2)}")
    for i in (3, 5):
        for qb in range(4):
            A(f"v_max3_f32 {v(dst + qb)}, {v(dst + qb)}, {v(S(qb) + i)}, {v(S(qb) + i + 1)}")
    for qb in range(4):
        A(f"v_max_f32 {v(dst + qb)}, {v(dst + qb)}, {v(S(qb) + 7)}")
    xlane(A, "v_max_f32", [dst + q for q in range(4)], [tmp + q for q in range(4)])


def o_to_lds(A, T):
    for qb in range(4):
        A(f"v_rcp_f32 {v(T + 2 * qb)}, {v(LS + 4 * qb)}")
    A(f"s_lshl_b32 {s(sT)}, {s(sW)}, 14")
    A(f"v_add_u32 {v(T + 8)}, {s(sT)}, {v(LANE16)}")
    n = 0
    for m in range(4):
        for qb in range(4):
            d = T + 12 + 4 * (n % 4)
            n += 1
            for e in range(2):
                r = acc(2 * m + e, qb)
                for i in (0, 2):
                    A(f"v_pk_mul_f32 {v(r + i, 2)}, {v(r + i, 2)}, {v(T + 2 * qb, 2)} op_sel_hi:[1,0]")
            for e in range(2):
                r = acc(2 * m + e, qb)
                for i in range(2):
                    A(f"v_cvt_pk_bf16_f32 {v(d + 2 * e + i)}, {v(r + 2 * i)}, {v(r + 2 * i + 1)}")
            A(f"ds_write_b128 {v(T + 8)}, {v(d, 4)} offset:{(m * 4 + qb) * 1024}")


def header(A, name):
    A(".p2align 8")
    A(f".globl {name}")
    A(f".type {name},@function")
    A.label(name)


def descriptor(A, name, nv, acc_off, ns=102):
    A(f".amdhsa_kernel {name}")
    A(f".amdhsa_next_free_vgpr {nv}")
    A(f".amdhsa_next_free_sgpr {ns}")
    A(f".amdhsa_accum_offset {acc_off}")
    A(".amdhsa_group_segment_fixed_size 0")
    A(".amdhsa_kernarg_size 96")
    A(".amdhsa_user_sgpr_count 2")
    A(".amdhsa_user_sgpr_kernarg_segment_ptr 1")
    A(".amdhsa_system_sgpr_workgroup_id_x 1")
    A(".amdhsa_float_denorm_mode_32 3")
    A(".end_amdhsa_kernel")


def main_kernel(A):
    header(A, KERNEL)
    A("s_cmp_ge_u32 s2, 256")
    A("s_cbranch_scc1 M_END")
    A("s_load_dwordx16 s[4:19], s[0:1], 0")
    A("s_load_dwordx8 s[20:27], s[0:1], 64")
    if OPT["stamps"]:
        A("s_memrealtime s[94:95]")
    T = LS
    I, C = T, T + 1
    A(f"v_lshrrev_b32 {v(T)}, 6, v0")
    A(f"v_and_b32 {v(LANE)}, 63, v0")
    lg = OPT["lg"]
    A(f"s_bfe_u32 {s(sG)}, s2, {hex(((3 - lg) << 16) | 0)}")
    A(f"v_readfirstlane_b32 {s(sW)}, {v(T)}")
    A(f"s_lshr_b32 {s(sU)}, s2, {3 + lg}")
    A(f"s_mov_b32 {s(sP)}, {s(sU)}")
    if lg:
        A(f"s_lshl_b32 {s(sG)}, {s(sG)}, {lg}")
        A(f"s_bfe_u32 {s(sT)}, s2, {hex((lg << 16) | 3)}")
        A(f"s_add_u32 {s(sG)}, {s(sG)}, {s(sT)}")
        A(f"s_bfe_u32 {s(sT)}, s2, {hex((lg << 16) | (3 - lg))}")
        A(f"s_lshl_b32 {s(sT)}, {s(sT)}, {5 - lg}")
        A(f"s_add_u32 {s(sP)}, {s(sP)}, {s(sT)}")
    A(f"v_lshlrev_b32 {v(LANE16)}, 4, {v(LANE)}")
    if OPT["warm"]:
        A("s_getpc_b64 s[76:77]")
        A.label("M_PC")
        A(f"v_lshlrev_b32 {v(T + 2)}, 7, v0")
        A(f"v_min_u32 {v(T + 2)}, M_SLOW-M_PC, {v(T + 2)}")
        A(f"global_load_dword {v(DUMMY)}, {v(T + 2)}, s[76:77]")
    A(f"s_mul_i32 {s(sRB)}, {s(sW)}, {RPITCH}")
    A(f"s_add_u32 {s(sRB)}, {s(sRB)}, {RING}")
    A(f"v_and_b32 {v(I)}, 15, {v(LANE)}")
    A(f"v_lshrrev_b32 {v(C)}, 4, {v(LANE)}")
    A(f"s_lshl_b32 {s(sT)}, {s(sW)}, 4")
    A(f"v_add_u32 {v(T + 2)}, {s(sT)}, {v(I)}")
    A(f"v_lshlrev_b32 {v(T + 2)}, 10, {v(T + 2)}")
    A(f"v_lshl_add_u32 {v(T + 2)}, {v(C)}, 4, {v(T + 2)}")
    A(f"s_lshl_b32 {s(sT + 1)}, {s(sP)}, 16")
    A(f"v_lshrrev_b32 {v(T + 3)}, 3, {v(LANE)}")
    A(f"v_and_b32 {v(T + 4)}, 7, {v(LANE)}")
    A(f"v_lshlrev_b32 {v(T + 5)}, 1, {v(C)}")
    A(f"v_xor_b32 {v(T + 4)}, {v(T + 4)}, {v(T + 5)}")
    A(f"v_lshlrev_b32 {v(T + 4)}, 4, {v(T + 4)}")
    A(f"v_xor_b32 {v(T + 5)}, 64, {v(T + 4)}")
    A(f"v_mul_u32_u24 {v(T + 6)}, 3584, {v(T + 3)}")
    A(f"v_add_u32 {v(VOG0)}, {v(T + 6)}, {v(T + 4)}")
    A(f"v_add_u32 {v(VOG1)}, {v(T + 6)}, {v(T + 5)}")
    A(f"v_add_u32 {v(VOG1)}, {8 * 3584 - 1024}, {v(VOG1)}")
    A(f"v_lshl_add_u32 {v(VOQ0)}, {v(T + 3)}, 13, {v(T + 4)}")
    A(f"v_lshl_add_u32 {v(VOQ1)}, {v(T + 3)}, 13, {v(T + 5)}")
    A(f"v_add_u32 {v(VOQ1)}, {8 * 8192 - 1024}, {v(VOQ1)}")
    A(f"v_lshl_add_u32 {v(VOO0)}, {v(T + 3)}, 10, {v(T + 4)}")
    A(f"v_lshl_add_u32 {v(VOO1)}, {v(T + 3)}, 10, {v(T + 5)}")
    A(f"v_add_u32 {v(VOO1)}, {8 * 1024 - 1024}, {v(VOO1)}")
    A("s_waitcnt lgkmcnt(0)")
    stamp(A, "start")
    if OPT["stamps"]:
        A("v_writelane_b32 v255, s94, 15")
    srd(A, sX, pX, 2048 * 1024)
    XR = 128
    for i in range(16):
        A(f"buffer_load_dwordx4 {v(XR + 4 * i, 4)}, {v(T + 2)}, {s(sX, 4)}, {s(sT + 1)} offen offset:{64 * i}")
    srd(A, sWS, pWS, WS_SIZE)
    srd(A, sDBG, pDBG, 256)
    A(f"s_and_b32 {s(sFP)}, s2, 7")
    A(f"s_lshl_b32 {s(sFP)}, {s(sFP)}, 2")
    A(f"s_lshr_b32 {s(sT + 2)}, s2, 6")
    A(f"s_add_u32 {s(sFP)}, {s(sFP)}, {s(sT + 2)}")
    A(f"s_bfe_u32 {s(sFC)}, s2, 0x30003")
    A(f"s_lshl_b32 {s(sY + 3)}, {s(sP)}, 5")
    A(f"s_add_u32 {s(sY + 3)}, {s(sY + 3)}, {s(sG)}")
    A(f"s_lshl_b32 {s(sY + 3)}, {s(sY + 3)}, 2")
    A(f"s_add_u32 {s(sY + 3)}, {s(sY + 3)}, {WS_FLAG}")
    A(f"v_mov_b32 {v(T + 3)}, 0")
    A("s_mov_b64 exec, 1")
    A(f"buffer_store_dword {v(T + 3)}, off, {s(sWS, 4)}, {s(sY + 3)} sc1")
    A("s_mov_b64 exec, -1")
    NW = 1
    R = 4 << lg
    if OPT["warm"]:
        A(f"s_lshl_b32 {s(sU)}, {s(sU)}, 2")
        A(f"s_add_u32 {s(sU)}, {s(sU)}, {s(sW)}")
        A(f"v_bfe_u32 {v(T + 3)}, {v(LANE)}, 2, {2 + lg}")
        A(f"v_mul_u32_u24 {v(T + 3)}, 3584, {v(T + 3)}")
        A(f"v_and_b32 {v(T + 4)}, 3, {v(LANE)}")
        A(f"v_lshl_add_u32 {v(T + 3)}, {v(T + 4)}, 7, {v(T + 3)}")
        A(f"s_mul_i32 {s(sT + 3)}, {s(sU)}, {R * 3584}")
        A(f"s_lshl_b32 {s(sT + 4)}, {s(sG)}, 9")
        A(f"s_add_u32 {s(sT + 3)}, {s(sT + 3)}, {s(sT + 4)}")
    A(f"s_cmp_eq_u32 {s(sG)}, 7")
    A("s_cbranch_scc1 M_PRE_Q")
    A.lines += setw_gu()
    if OPT["warm"]:
        A(f"buffer_load_dword {v(DUMMY)}, {v(T + 3)}, {s(sWA, 4)}, {s(sT + 3)} offen")
        A(f"buffer_load_dword {v(DUMMY)}, {v(T + 3)}, {s(sWB, 4)}, {s(sT + 3)} offen")
    A("s_branch M_PRE_DONE")
    A.label("M_PRE_Q")
    A.lines += setw_d()
    A(f"v_mov_b32 {v(VOG0)}, {v(VOO0)}")
    A(f"v_mov_b32 {v(VOG1)}, {v(VOO1)}")
    if OPT["warm"]:
        A(f"buffer_load_dword {v(DUMMY)}, {v(VOG0)}, {s(sWA, 4)}, {s(sOFF)} offen")
        A(f"buffer_load_dword {v(DUMMY)}, {v(VOG0)}, {s(sWB, 4)}, {s(sOFF)} offen")
    A.label("M_PRE_DONE")
    stamp(A, "iss")
    NQ = max(1, R // 8)
    if OPT["warm"]:
        NW += 2
        srd(A, sX, pWQ, 512 * 8192)
        A(f"v_bfe_u32 {v(T + 3)}, {v(LANE)}, 3, {min(3, 2 + lg)}")
        A(f"v_and_b32 {v(T + 4)}, 7, {v(LANE)}")
        A(f"v_lshlrev_b32 {v(T + 4)}, 7, {v(T + 4)}")
        A(f"v_lshl_add_u32 {v(DUMMY + 2)}, {v(T + 3)}, 13, {v(T + 4)}")
        A(f"v_lshl_add_u32 {v(DUMMY + 1)}, {v(T + 3)}, 10, {v(T + 4)}")
    I4, E8, B1 = T + 2, T + 3, T + 4
    A(f"v_lshrrev_b32 {v(I4)}, 2, {v(I)}")
    A(f"v_and_b32 {v(E8)}, 3, {v(I)}")
    A(f"v_lshlrev_b32 {v(E8)}, 3, {v(E8)}")
    A(f"v_lshrrev_b32 {v(B1)}, 3, {v(I)}")
    A(f"v_lshl_add_u32 {v(T + 5)}, {v(C)}, 3, {v(I4)}")
    A(f"v_lshl_add_u32 {v(T + 5)}, {v(T + 5)}, 7, {s(sRB)}")
    A(f"v_and_b32 {v(T + 6)}, 1, {v(C)}")
    A(f"v_lshl_add_u32 {v(T + 6)}, {v(T + 6)}, 1, {v(B1)}")
    A(f"v_add_u32 {v(T + 7)}, {v(T + 5)}, {v(E8)}")
    for ch in range(4):
        A(f"v_xor_b32 {v(T + 8)}, {ch}, {v(T + 6)}")
        A(f"v_lshl_add_u32 {v(WAG + ch)}, {v(T + 8)}, 5, {v(T + 7)}")
    A(f"v_bfe_u32 {v(T + 7)}, {v(I)}, 1, 1")
    A(f"v_xor_b32 {v(T + 6)}, {v(T + 6)}, {v(T + 7)}")
    A(f"v_and_b32 {v(T + 7)}, 1, {v(I)}")
    A(f"v_lshl_add_u32 {v(T + 7)}, {v(T + 7)}, 4, {v(T + 5)}")
    for mm in range(2):
        A(f"v_xor_b32 {v(T + 8)}, {2 * mm}, {v(T + 6)}")
        A(f"v_lshl_add_u32 {v(WAQ + mm)}, {v(T + 8)}, 5, {v(T + 7)}")
    A(f"v_lshl_add_u32 {v(T + 5)}, {v(C)}, 2, {v(I4)}")
    A(f"v_lshl_add_u32 {v(T + 5)}, {v(T + 5)}, 7, {s(sRB)}")
    A(f"v_add_u32 {v(T + 5)}, {v(T + 5)}, {v(E8)}")
    A(f"v_lshrrev_b32 {v(T + 6)}, 1, {v(C)}")
    A(f"v_xor_b32 {v(T + 6)}, {v(T + 6)}, {v(C)}")
    A(f"v_and_b32 {v(T + 6)}, 1, {v(T + 6)}")
    A(f"v_lshl_add_u32 {v(T + 6)}, {v(T + 6)}, 1, {v(B1)}")
    for ch in range(4):
        A(f"v_xor_b32 {v(T + 8)}, {ch}, {v(T + 6)}")
        A(f"v_lshl_add_u32 {v(WAO + ch)}, {v(T + 8)}, 5, {v(T + 5)}")
    A(f"v_lshrrev_b32 {v(T + 5)}, 1, {v(C)}")
    A(f"v_mul_u32_u24 {v(T + 5)}, {RPITCH}, {v(T + 5)}")
    A(f"v_and_b32 {v(T + 6)}, 1, {v(C)}")
    A(f"v_lshl_add_u32 {v(T + 6)}, {v(T + 6)}, 2, {v(I4)}")
    A(f"v_lshl_add_u32 {v(T + 5)}, {v(T + 6)}, 8, {v(T + 5)}")
    A(f"v_add_u32 {v(T + 5)}, {v(T + 5)}, {v(E8)}")
    A(f"v_add_u32 {v(T + 5)}, {RING + KVS * 4096}, {v(T + 5)}")
    for db in range(8):
        A(f"v_xor_b32 {v(T + 7)}, {db}, {v(T + 6)}")
        A(f"v_lshl_add_u32 {v(VAD + db)}, {v(T + 7)}, 5, {v(T + 5)}")
    A(f"v_mul_u32_u24 {v(T + 5)}, {RPITCH}, {v(B1)}")
    A(f"v_and_b32 {v(T + 6)}, 7, {v(I)}")
    A(f"v_lshl_add_u32 {v(T + 5)}, {v(T + 6)}, 8, {v(T + 5)}")
    A(f"v_add_u32 {v(T + 5)}, {RING + KVS * 4096}, {v(T + 5)}")
    A(f"v_xor_b32 {v(T + 6)}, {v(C)}, {v(I)}")
    for ds in range(4):
        A(f"v_xor_b32 {v(T + 7)}, {4 * ds}, {v(T + 6)}")
        A(f"v_lshl_add_u32 {v(KAD + ds)}, {v(T + 7)}, 4, {v(T + 5)}")
    A(f"s_lshl_b32 {s(sT)}, {s(sW)}, 11")
    A(f"v_lshl_add_u32 {v(T + 6)}, {v(C)}, 8, {s(sT)}")
    A(f"v_lshlrev_b32 {v(T + 7)}, 1, {v(C)}")
    A(f"v_xor_b32 {v(T + 7)}, {v(T + 7)}, {v(I)}")
    A(f"v_lshl_add_u32 {v(VOV0)}, {v(T + 7)}, 4, {v(T + 6)}")
    A(f"v_xor_b32 {v(T + 7)}, 8, {v(T + 7)}")
    A(f"v_lshl_add_u32 {v(VOV1)}, {v(T + 7)}, 4, {v(T + 6)}")
    A(f"s_and_b32 {s(sT)}, {s(sW)}, 1")
    A(f"s_lshl_b32 {s(sT)}, {s(sT)}, 3")
    A(f"v_or_b32 {v(T + 7)}, {s(sT)}, {v(C)}")
    A(f"v_xor_b32 {v(T + 7)}, {v(T + 7)}, {v(I)}")
    A(f"v_lshl_add_u32 {v(VOK0)}, {v(T + 7)}, 4, {v(T + 6)}")
    A(f"v_xor_b32 {v(T + 7)}, 4, {v(T + 7)}")
    A(f"v_lshl_add_u32 {v(VOK1)}, {v(T + 7)}, 4, {v(T + 6)}")
    for i, r in enumerate((VOK0, VOK1, VOV0, VOV1)):
        A(f"v_mov_b32 {v(SAVE + i)}, {v(r)}")
    A(f"s_lshl_b32 {s(sT)}, {s(sG)}, 19")
    A(f"s_add_u32 {s(sK)}, {s(pK)}, {s(sT)}")
    A(f"s_addc_u32 {s(sK + 1)}, {s(pK + 1)}, 0")
    A(f"s_mov_b32 {s(sK + 2)}, {524288}")
    A(f"s_mov_b32 {s(sK + 3)}, 0x20000")
    A(f"s_add_u32 {s(sV)}, {s(pV)}, {s(sT)}")
    A(f"s_addc_u32 {s(sV + 1)}, {s(pV + 1)}, 0")
    A(f"s_sub_u32 {s(sV)}, {s(sV)}, {8192 + 2048}")
    A(f"s_subb_u32 {s(sV + 1)}, {s(sV + 1)}, 0")
    A(f"s_mov_b32 {s(sV + 2)}, {524288 + 8192 + 2048}")
    A(f"s_mov_b32 {s(sV + 3)}, 0x20000")
    A(f"s_mov_b32 {s(sKV)}, 0")
    A(f"s_mov_b32 {s(sKVSTEP)}, 8192")
    A(f"s_mov_b32 {s(sKVX)}, 0")
    LW = T + 8
    A(f"s_lshl_b32 {s(sT)}, {s(sW)}, 10")
    A(f"v_add_u32 {v(LW)}, {s(sT)}, {v(LANE16)}")
    A(f"v_mov_b32 {v(BAD)}, {v(LANE16)}")
    A(f"v_cmp_eq_u32 vcc, 0, {v(I)}")
    A(f"v_mov_b32 {v(T + 5)}, 0x3f803f80")
    A(f"s_mov_b32 {s(sT)}, 0xffff0000")
    A(f"v_cndmask_b32 {v(ONE)}, 0, {v(T + 5)}, vcc")
    for i in range(1, 4):
        A(f"v_mov_b32 {v(ONE + i)}, {v(ONE)}")
    SU, SQ = T + 10, T + 12
    for i in range(16):
        A(f"s_waitcnt vmcnt({NW + 15 - i})")
        if i == 0:
            stamp(A, "x0")
        if i == 15:
            stamp(A, "x15")
        for k in range(4):
            A(f"v_lshlrev_b32 {v(8 * i + 2 * k)}, 16, {v(XR + 4 * i + k)}")
            A(f"v_and_b32 {v(8 * i + 2 * k + 1)}, {s(sT)}, {v(XR + 4 * i + k)}")
        for k in range(4):
            r = v(8 * i + 2 * k, 2)
            if i == 0 and k == 0:
                A(f"v_pk_mul_f32 {v(SQ, 2)}, {r}, {r}")
                A(f"v_mov_b32 {v(SU)}, {v(0)}")
                A(f"v_mov_b32 {v(SU + 1)}, {v(1)}")
            else:
                A(f"v_pk_fma_f32 {v(SQ, 2)}, {r}, {r}, {v(SQ, 2)}")
                A(f"v_pk_add_f32 {v(SU, 2)}, {r}, {v(SU, 2)}")
    if OPT["warm"] and OPT["warmq"]:
        A(f"s_lshl_b32 {s(sT + 3)}, {s(sU)}, {15 + lg}")
        A(f"s_lshl_b32 {s(sT + 4)}, {s(sG)}, 10")
        A(f"s_add_u32 {s(sT + 3)}, {s(sT + 3)}, {s(sT + 4)}")
        for i in range(NQ):
            A(f"buffer_load_dword {v(DUMMY)}, {v(DUMMY + 2)}, {s(sX, 4)}, {s(sT + 3)} offen")
            A(f"s_add_u32 {s(sT + 3)}, {s(sT + 3)}, {8 * 8192}")
        NW += NQ
    A(f"v_add_f32 {v(SU)}, {v(SU)}, {v(SU + 1)}")
    A(f"v_add_f32 {v(SQ)}, {v(SQ)}, {v(SQ + 1)}")
    xlane(A, "v_add_f32", [SU, SQ], [SU + 1, SQ + 1])
    A(f"v_mul_f32 {v(SU)}, {f32(1.0 / 512)}, {v(SU)}")
    A(f"v_mul_f32 {v(SQ)}, {f32(1.0 / 512)}, {v(SQ)}")
    A(f"v_fma_f32 {v(SQ)}, -{v(SU)}, {v(SU)}, {v(SQ)}")
    A(f"v_max_f32 {v(SQ)}, 0, {v(SQ)}")
    A(f"v_add_f32 {v(SQ)}, {f32(1e-5)}, {v(SQ)}")
    A(f"v_rsq_f32 {v(SQ)}, {v(SQ)}")
    A("s_nop 0")
    A(f"v_mul_f32 {v(SU)}, {v(SU)}, {v(SQ)}")
    A(f"v_sub_f32 {v(SU)}, 0, {v(SU)}")
    stamp(A, "stats")
    early = [[] for _ in range(16)]
    for j in range(6):
        pre, d, post = dma_w((j + 1) % 6, j % 2, VO_G)
        for n, x in enumerate(d):
            k = (4 * j + n) * 2 // 3
            if n == 0:
                early[k] += pre + ["s_nop 0"]
            early[k].append(x)
        early[k] += post
    for i in range(16):
        for k in range(4):
            r = v(8 * i + 2 * k, 2)
            A(f"v_pk_fma_f32 {r}, {r}, {v(SQ, 2)}, {v(SU, 2)} op_sel_hi:[1,0,0]")
        for k in range(4):
            A(f"v_cvt_pk_bf16_f32 {v(8 * i + k)}, {v(8 * i + 2 * k)}, {v(8 * i + 2 * k + 1)}")
        A(f"ds_write_b128 {v(LW)}, {v(8 * i, 4)} offset:{4096 * i}")
        for x in early[i]:
            A(x)
    stamp(A, "norm")
    A(f"s_cmp_eq_u32 {s(sG)}, 7")
    A("s_cbranch_scc1 M_WD")
    A(f"s_waitcnt vmcnt(20) lgkmcnt(0)")
    A("s_barrier")
    stamp(A, "ln")
    for x in first_reads("g", 1, 0):
        A(x)
    tail = [(setw_q(),) + dma_w(3, 0, VO_Q)] + [dma_w((3 + j) % 6, j % 2, VO_Q) for j in range(1, 6)]
    gemm_phase(A, "gu", "g", 1, 0, VO_G, tail, [16] * 6, first_reads("q", 3, 1))
    stamp(A, "gut")
    A(f"s_mul_i32 {s(sT)}, {s(sP)}, {56 * 4096}")
    A(f"s_lshl_b32 {s(sT + 1)}, {s(sG)}, 15")
    A(f"s_add_u32 {s(sT)}, {s(sT)}, {s(sT + 1)}")
    A(f"s_lshl_b32 {s(sT + 1)}, {s(sW)}, 13")
    A(f"s_add_u32 {s(sT)}, {s(sT)}, {s(sT + 1)}")
    A(f"s_add_u32 {s(sT + 1)}, {s(sT)}, 4096")
    for m in range(2):
        for qb in range(4):
            d = SR + 4 * (m * 4 + qb)
            for e in range(2):
                r, u = acc(2 * m + e, qb), acc(4 + 2 * m + e, qb)
                for i in (0, 2):
                    A(f"v_pk_mul_f32 {v(r + i, 2)}, {v(r + i, 2)}, {v(u + i, 2)}")
            for e in range(2):
                r = acc(2 * m + e, qb)
                for i in range(2):
                    A(f"v_cvt_pk_bf16_f32 {v(d + 2 * e + i)}, {v(r + 2 * i)}, {v(r + 2 * i + 1)}")
            A(f"buffer_store_dwordx4 {v(d, 4)}, {v(LANE16)}, {s(sWS, 4)}, {s(sT + m)} offen offset:{qb * 1024} {OPT['st_flag']}")
    A("s_branch M_Q")
    A.label("M_WD")
    A("s_waitcnt vmcnt(0)")
    A(f"s_cmp_ge_u32 {s(sP)}, 28")
    A("s_cbranch_scc1 M_WD_DONE")
    A(f"s_mul_i32 {s(sT)}, {s(sW)}, {2 * 56 * 4096}")
    A(f"s_lshl_b32 {s(sT + 1)}, {s(sP)}, 13")
    A(f"s_add_u32 {s(sT)}, {s(sT)}, {s(sT + 1)}")
    A(f"s_add_u32 {s(sT)}, {s(sT)}, {WS_WD}")
    for j in range(4):
        for x in w_reads("o", j + 1, lambda nbl, jj: v(16 * j + 4 * nbl + 2 * jj, 2)):
            A(x)
        A(f"s_add_u32 {s(sT + 1)}, {s(sT)}, {(j % 2) * 56 * 4096 + (j // 2) * 4096}")
        A("s_waitcnt lgkmcnt(0)")
        for nbl in range(4):
            A(f"buffer_store_dwordx4 {v(16 * j + 4 * nbl, 4)}, {v(LANE16)}, {s(sWS, 4)}, {s(sT + 1)} offen offset:{nbl * 1024} {OPT['st_flag']}")
    A.label("M_WD_DONE")
    A.lines += setw_q()
    for j in range(6):
        emit_item(A, dma_w((j + 3) % 6, j % 2, VO_Q))
    A("s_waitcnt vmcnt(20) lgkmcnt(0)")
    A("s_barrier")
    stamp(A, "ln")
    for x in first_reads("q", 3, 1):
        A(x)
    A.label("M_Q")
    stamp(A, "gu")
    tail = [dma_kv(5, konly=True), (setw_o(),) + dma_w(0, 0, VO_O), dma_w(1, 1, VO_O),
            dma_kv(KVS + 0), dma_kv(KVS + 1), dma_kv(KVS + 2)]
    gemm_phase(A, "q", "q", 3, 1, VO_Q, tail, [16, 14, 14, 14, 14, None], None)
    stamp(A, "q")
    A("s_waitcnt vmcnt(20)")
    A("s_barrier")
    for f in range(8):
        A(kread(3, f))
    A(f"s_cmp_lg_u32 {s(sW)}, 0")
    A("s_cbranch_scc1 M_NOSIG")
    A(f"s_lshl_b32 {s(sT + 2)}, {s(sP)}, 2")
    A(f"v_mov_b32 {v(WAG)}, {s(sT + 2)}")
    A(f"v_mov_b32 {v(WAG + 1)}, 1")
    A(f"s_movk_i32 {s(sT + 3)}, 128")
    A(f"v_writelane_b32 {v(WAG)}, {s(sT + 3)}, 1")
    A(f"s_cmp_eq_u32 {s(sG)}, 7")
    A(f"s_cselect_b32 exec_lo, 3, 1")
    A(f"s_mov_b32 exec_hi, 0")
    A(f"buffer_atomic_add {v(WAG + 1)}, {v(WAG)}, {s(sDBG, 4)}, 0 offen")
    A("s_mov_b64 exec, -1")
    A.label("M_NOSIG")
    if OPT["warm"]:
        A(f"s_lshl_b32 {s(sT + 2)}, {s(sU)}, {12 + lg}")
        A(f"s_lshl_b32 {s(sT + 3)}, {s(sG)}, 19")
        A(f"s_add_u32 {s(sT + 2)}, {s(sT + 2)}, {s(sT + 3)}")
        for i in range(NQ):
            A(f"buffer_load_dword {v(DUMMY)}, {v(DUMMY + 1)}, {s(sWA, 4)}, {s(sT + 2)} offen")
            A(f"s_add_u32 {s(sT + 2)}, {s(sT + 2)}, {8 * 1024}")
    A(f"s_mov_b32 {s(sT)}, {f32(1.4426950408889634 * 128 ** -0.5)}")
    A(f"s_mov_b32 {s(sT + 1)}, {s(sT)}")
    for i in range(32):
        A(f"v_accvgpr_write_b32 {a(VF + i)}, 0")
    for qb in range(4):
        for m in range(4):
            for e in range(2):
                r = acc(2 * m + e, qb)
                for i in (0, 2):
                    A(f"v_pk_mul_f32 {v(r + i, 2)}, {v(r + i, 2)}, {s(sT, 2)}")
            for e in range(2):
                r = acc(2 * m + e, qb)
                for i in range(2):
                    A(f"v_cvt_pk_bf16_f32 {v(r + i)}, {v(r + 2 * i)}, {v(r + 2 * i + 1)}")
            for e in range(2):
                r = acc(2 * m + e, qb)
                for i in range(2):
                    A(f"v_accvgpr_write_b32 {a(QF + (qb * 4 + m) * 4 + 2 * e + i)}, {v(r + i)}")
    A("s_waitcnt lgkmcnt(0)")
    z = [PR + 8 + i for i in range(8)] + [LS + i for i in range(16)]
    for qb in range(4):
        for kb in range(2):
            for ds in range(4):
                A(qk(qb, kb, ds, "0"))
                if z:
                    A(f"v_mov_b32 {v(z.pop())}, 0")
    for i in range(8):
        A(mfma32(v(16 * i, 16), a(VF, 4), a(VF + 4, 4), "0"))
    TM = NM
    rowmax(A, PR, PR + 4)
    for qb in range(4):
        for i in range(4):
            A(f"v_sub_f32 {v(NM + 4 * qb + i)}, 0, {v(PR + qb)}")
    for i in range(2, 8):
        A(f"v_mov_b32 {v(S(3) + i)}, {f32(-1e30) if i > 2 else 0}")
    A(f"s_mov_b32 {s(sCNT)}, 16")
    A(f"s_mov_b32 {s(sTRIG)}, 4")
    stamp(A, "att0")
    A(".p2align 6")
    A.label("L_ATT")
    body = Asm()
    attn_iter(body, 0, {21: [f"s_cmp_eq_u32 {s(sCNT)}, {s(sTRIG)}"], 23: ["s_cbranch_scc1 M_HOOK", "M_HOOK_RET:"]})
    for u in range(1, 4):
        attn_iter(body, u, {61: [f"s_sub_u32 {s(sCNT)}, {s(sCNT)}, 1"], 63: [f"s_cmp_lg_u32 {s(sCNT)}, 0"]} if u == 3 else None)
    A.lines += body.lines
    A("s_cbranch_scc1 L_ATT")
    for p in check_hazards(body.lines + body.lines, "attn loop"):
        print("HAZARD", p)
    for e in range(3, 8):
        A(ex(3, e))
    for db in range(3):
        A(pv(2, db))
        A(cv(3, db + 1))
    for db in range(3, 8):
        A(pv(2, db))
    A(rsum(2))
    A(rsum(3))
    for db in range(8):
        A(pv(3, db))
    stamp(A, "att1")
    T = SR
    xlane(A, "v_add_f32", [LS + 4 * q for q in range(4)], [T + q for q in range(4)])
    A(f"v_add_f32 {v(T)}, {v(LS)}, {v(LS + 4)}")
    A(f"v_add_f32 {v(T + 1)}, {v(LS + 8)}, {v(LS + 12)}")
    A(f"v_add_f32 {v(T)}, {v(T)}, {v(T + 1)}")
    A(f"s_mov_b32 {s(sT)}, {f32(2.0 ** 64) if not OPT['force_slow'] else f32(-1.0)}")
    A(f"v_cmp_nge_f32 vcc, {s(sT)}, {v(T)}")
    A(f"v_mov_b32 {v(T + 2)}, {s(sRB)}")
    A("s_nop 0")
    A(f"s_cmp_lg_u64 vcc, 0")
    A(f"s_cselect_b32 {s(sT + 1)}, 1, 0")
    A(f"v_mov_b32 {v(T + 3)}, {s(sT + 1)}")
    A(f"ds_write_b32 {v(T + 2)}, {v(T + 3)} offset:{5 * 4096}")
    o_to_lds(A, T + 4)
    A(f"v_mov_b32 {v(BAD)}, {v(LANE16)}")
    A(f"v_and_b32 {v(T + 2)}, 3, {v(LANE)}")
    A(f"v_mul_u32_u24 {v(T + 2)}, {RPITCH}, {v(T + 2)}")
    A(f"v_add_u32 {v(T + 2)}, {RING}, {v(T + 2)}")
    A("s_waitcnt vmcnt(12) lgkmcnt(0)")
    A("s_barrier")
    A(f"ds_read_b32 {v(T + 3)}, {v(T + 2)} offset:{5 * 4096}")
    for x in first_reads("o", 0, 0):
        A(x)
    A("s_waitcnt lgkmcnt(12)")
    A(f"v_cmp_ne_u32 vcc, 0, {v(T + 3)}")
    A("s_nop 0")
    A("s_cmp_lg_u64 vcc, 0")
    A("s_cbranch_scc1 M_SLOW")
    A("s_barrier")
    A.label("M_OPROJ")
    A(f"s_add_u32 {s(sOFF)}, {s(sOFF)}, {s(sSTEP)}")
    A(f"s_add_u32 {s(sOFF2)}, {s(sOFF2)}, {s(sSTEP)}")
    emit_item(A, dma_w(5, 1, VO_O))
    stamp(A, "op0")
    A(f"s_mul_i32 {s(sT)}, {s(sW)}, {14 * 4096}")
    A(f"s_mul_i32 {s(sY)}, {s(sFP)}, {56 * 4096}")
    A(f"s_add_u32 {s(sY)}, {s(sY)}, {s(sT)}")
    A(f"s_mul_i32 {s(sY + 1)}, {s(sFC)}, {56 * 4096}")
    A(f"s_add_u32 {s(sY + 1)}, {s(sY + 1)}, {s(sT)}")
    A(f"s_add_u32 {s(sY + 1)}, {s(sY + 1)}, {WS_WD}")
    pre = []
    for k in range(4):
        pre += y_loads(k)
    ex_, n = [[] for _ in range(6)], 0
    for x in pre:
        ex_[min(5, n // 6) if x.startswith("buffer_") else min(5, (n - 1) // 6)].append(x)
        n += x.startswith("buffer_")
    gemm_phase(A, "o", "o", 0, 0, VO_O, [None] * 6, [16, 18, 20, 22, 24, None], None, ex_)
    stamp(A, "op1")
    A(f"s_lshl_b32 {s(sT)}, {s(sP)}, 19")
    A(f"s_lshl_b32 {s(sT + 1)}, {s(sW)}, 17")
    A(f"s_add_u32 {s(sT)}, {s(sT)}, {s(sT + 1)}")
    A(f"s_lshl_b32 {s(sT + 1)}, {s(sG)}, 13")
    A(f"s_add_u32 {s(sT)}, {s(sT)}, {s(sT + 1)}")
    A(f"s_add_u32 {s(sT)}, {s(sT)}, {WS_S}")
    A(f"s_add_u32 {s(sT + 1)}, {s(sT)}, 4096")
    A(f"s_add_u32 {s(sT + 2)}, {s(sT)}, 65536")
    A(f"s_add_u32 {s(sT + 3)}, {s(sT)}, {65536 + 4096}")
    n = 0
    for X in range(2):
        for qb in range(4):
            for m in range(2):
                d = SR + 4 * n
                n += 1
                for e in range(2):
                    r = acc(4 * X + 2 * m + e, qb)
                    for i in range(2):
                        A(f"v_cvt_pk_bf16_f32 {v(d + 2 * e + i)}, {v(r + 2 * i)}, {v(r + 2 * i + 1)}")
                A(f"buffer_store_dwordx4 {v(d, 4)}, {v(LANE16)}, {s(sWS, 4)}, {s(sT + 2 * X + qb // 2)} offen offset:{((qb % 2) * 2 + m) * 1024} {OPT['st_flag']}")
    stamp(A, "st")
    final_phase(A)
    A.label("M_END")
    A("s_endpgm")
    A.label("M_HOOK")
    PA, PE, PV_ = WAG, WAG + 1, WAG + 2
    A(f"s_cmp_eq_u32 {s(sTRIG)}, 1")
    A("s_cbranch_scc1 M_SWITCH")
    A(f"s_cmp_eq_u32 {s(sTRIG)}, 3")
    A("s_cbranch_scc1 M_CHECK")
    A(f"s_lshl_b32 {s(sT)}, {s(sFP)}, 2")
    A(f"v_and_b32 {v(PV_)}, 1, {v(LANE)}")
    A(f"v_cmp_eq_u32 vcc, 0, {v(PV_)}")
    A(f"v_mov_b32 {v(PA)}, {s(sT)}")
    A(f"v_mov_b32 {v(PE)}, 0x80")
    A(f"v_cndmask_b32 {v(PA)}, {v(PE)}, {v(PA)}, vcc")
    A(f"v_mov_b32 {v(PE)}, 8")
    A(f"v_cndmask_b32 {v(PE)}, 32, {v(PE)}, vcc")
    A(f"s_mov_b32 {s(sTRIG)}, 3")
    A(f"buffer_load_dword {v(PV_)}, {v(PA)}, {s(sDBG, 4)}, 0 offen sc1")
    A("s_branch M_HOOK_RET")
    A.label("M_CHECK")
    A(f"s_mov_b32 {s(sT)}, {SPIN}")
    A.label("L_CHECK")
    A(f"v_cmp_ne_u32 vcc, {v(PV_)}, {v(PE)}")
    A(f"s_sub_u32 {s(sT)}, {s(sT)}, 1")
    A("s_cbranch_scc1 M_READY")
    A("s_cbranch_vccz M_READY")
    A(f"buffer_load_dword {v(PV_)}, {v(PA)}, {s(sDBG, 4)}, 0 offen sc1")
    A("s_waitcnt vmcnt(0)")
    A("s_branch L_CHECK")
    A.label("M_READY")
    A(f"s_mov_b32 {s(sTRIG)}, 1")
    if OPT["warmy"]:
        A(f"s_lshr_b32 {s(sT)}, s2, 3")
        A(f"s_lshl_b32 {s(sT)}, {s(sT)}, 2")
        A(f"s_add_u32 {s(sT)}, {s(sT)}, {s(sW)}")
        A(f"v_min_u32 {v(PA)}, 55, {v(LANE)}")
        A(f"v_lshlrev_b32 {v(PA)}, 7, {v(PA)}")
        A(f"s_mul_i32 {s(sT + 1)}, {s(sT)}, {112 * 128}")
        A(f"s_add_u32 {s(sT + 1)}, {s(sT + 1)}, {WS_WD}")
        A(f"buffer_load_dword {v(DUMMY)}, {v(PA)}, {s(sWS, 4)}, {s(sT + 1)} offen sc1")
        A(f"s_add_u32 {s(sT + 1)}, {s(sT + 1)}, {56 * 128}")
        A(f"buffer_load_dword {v(DUMMY)}, {v(PA)}, {s(sWS, 4)}, {s(sT + 1)} offen sc1")
        A(f"s_lshl_b32 {s(sT)}, {s(sFC)}, 2")
        A(f"s_add_u32 {s(sT)}, {s(sT)}, {s(sW)}")
        A(f"s_mul_i32 {s(sT)}, {s(sT)}, {56 * 128}")
        A(f"s_mul_i32 {s(sT + 1)}, {s(sFP)}, {56 * 4096}")
        A(f"s_add_u32 {s(sT + 1)}, {s(sT + 1)}, {s(sT)}")
        A(f"buffer_load_dword {v(DUMMY)}, {v(PA)}, {s(sWS, 4)}, {s(sT + 1)} offen sc1")
    A("s_branch M_HOOK_RET")
    A.label("M_SWITCH")
    A(f"s_mov_b32 {s(sTRIG)}, 0")
    srd(A, sK, pWO, 4096 * 1024)
    srd(A, sV, pWO, 4096 * 1024 - (16 * 1024 - 2048), 16 * 1024 - 2048)
    A(f"s_mov_b32 {s(sKV)}, {s(sOFF)}")
    A(f"s_mov_b32 {s(sKVSTEP)}, 128")
    A(f"s_mov_b32 {s(sKVX)}, {128 ^ (32 * 1024 - 128)}")
    A(f"v_mov_b32 {v(VOK0)}, {v(VOO0)}")
    A(f"v_mov_b32 {v(VOK1)}, {v(VOO1)}")
    A(f"v_mov_b32 {v(VOV0)}, {v(VOO0)}")
    A(f"v_mov_b32 {v(VOV1)}, {v(VOO1)}")
    A("s_branch M_HOOK_RET")
    A.label("M_SLOW")
    slow_path(A)
    A("s_branch M_OPROJ")


def slow_path(A):
    MX, TM, AL = NM, NM + 4, NM + 8
    A("s_waitcnt vmcnt(0) lgkmcnt(0)")
    A(f"s_lshl_b32 {s(sT)}, {s(sG)}, 19")
    A(f"s_add_u32 {s(sK)}, {s(pK)}, {s(sT)}")
    A(f"s_addc_u32 {s(sK + 1)}, {s(pK + 1)}, 0")
    A(f"s_mov_b32 {s(sK + 2)}, {524288}")
    A(f"s_mov_b32 {s(sK + 3)}, 0x20000")
    A(f"s_add_u32 {s(sV)}, {s(pV)}, {s(sT)}")
    A(f"s_addc_u32 {s(sV + 1)}, {s(pV + 1)}, 0")
    A(f"s_sub_u32 {s(sV)}, {s(sV)}, 2048")
    A(f"s_subb_u32 {s(sV + 1)}, {s(sV + 1)}, 0")
    A(f"s_mov_b32 {s(sV + 2)}, {524288 + 2048}")
    A(f"s_mov_b32 {s(sV + 3)}, 0x20000")
    for i in range(128):
        A(f"v_mov_b32 {v(i)}, 0")
    for i in range(16):
        A(f"v_mov_b32 {v(LS + i)}, 0")
    for qb in range(4):
        A(f"v_mov_b32 {v(MX + qb)}, 0xff800000")
    A(f"s_mov_b32 {s(sKV)}, 0")
    A(f"s_add_u32 m0, {s(sRB)}, {5 * 4096}")
    A.label("L_SLOW")
    A("s_barrier")
    A(f"buffer_load_dwordx4 {v(SAVE)}, {s(sK, 4)}, {s(sKV)} offen lds")
    A(f"buffer_load_dwordx4 {v(SAVE + 1)}, {s(sK, 4)}, {s(sKV)} offen offset:1024 lds")
    A(f"buffer_load_dwordx4 {v(SAVE + 2)}, {s(sV, 4)}, {s(sKV)} offen offset:2048 lds")
    A(f"buffer_load_dwordx4 {v(SAVE + 3)}, {s(sV, 4)}, {s(sKV)} offen offset:3072 lds")
    A("s_waitcnt vmcnt(0)")
    A("s_barrier")
    for f in range(8):
        A(kread(3, f))
    A("s_waitcnt lgkmcnt(0)")
    for j in range(16):
        A(vread(3, j))
        if j == 7:
            A("s_waitcnt lgkmcnt(0)")
    for qb in range(4):
        for kb in range(2):
            for ds in range(4):
                A(qk(qb, kb, ds, "0"))
    A("s_nop 15")
    rowmax(A, TM, PR)
    for qb in range(4):
        A(f"v_max_f32 {v(TM + qb)}, {v(TM + qb)}, {v(MX + qb)}")
        A(f"v_sub_f32 {v(AL + 2 * qb)}, {v(MX + qb)}, {v(TM + qb)}")
        A(f"v_exp_f32 {v(AL + 2 * qb)}, {v(AL + 2 * qb)}")
        A(f"v_mov_b32 {v(MX + qb)}, {v(TM + qb)}")
        A(f"v_mul_f32 {v(LS + 4 * qb)}, {v(LS + 4 * qb)}, {v(AL + 2 * qb)}")
        for db in range(8):
            for i in (0, 2):
                r = v(acc(db, qb) + i, 2)
                A(f"v_pk_mul_f32 {r}, {r}, {v(AL + 2 * qb, 2)} op_sel_hi:[1,0]")
        for e in range(8):
            A(f"v_sub_f32 {v(S(qb) + e)}, {v(S(qb) + e)}, {v(TM + qb)}")
        for e in range(8):
            A(ex(qb, e))
        A("s_nop 0")
        for j in range(4):
            A(cv(qb, j))
    A("s_waitcnt lgkmcnt(0)")
    A("s_nop 1")
    for qb in range(4):
        A(rsum(qb))
        for db in range(8):
            A(pv(qb, db))
    A(f"s_add_u32 {s(sKV)}, {s(sKV)}, 8192")
    A("s_nop 15")
    A(f"s_cmp_lt_u32 {s(sKV)}, {524288}")
    A("s_cbranch_scc1 L_SLOW")
    xlane(A, "v_add_f32", [LS + 4 * q for q in range(4)], [SR + q for q in range(4)])
    A("s_barrier")
    o_to_lds(A, SR + 4)
    A("s_waitcnt lgkmcnt(0)")
    A("s_barrier")
    for x in first_reads("o", 0, 0):
        A(x)


NBUF, NK = 5, 14


def y_loads(k):
    base = 32 * (k % NBUF)
    o = []
    for i in range(4):
        o.append(f"buffer_load_dwordx4 {a(base + 4 * i, 4)}, {v(LANE16)}, {s(sWS, 4)}, {s(sY + 1)} offen offset:{i * 1024} sc1")
        o.append(f"buffer_load_dwordx4 {a(base + 16 + 4 * i, 4)}, {v(LANE16)}, {s(sWS, 4)}, {s(sY)} offen offset:{i * 1024} sc1")
    o.append(f"s_add_u32 {s(sY)}, {s(sY)}, 4096")
    o.append(f"s_add_u32 {s(sY + 1)}, {s(sY + 1)}, 4096")
    return o


def final_phase(A):
    YA = 0
    SP = 64
    XR = 192
    TT, FA, FV = 200, 201, 202
    SS = 144
    order = [("k", k) for k in range(4) for _ in range(8)] + [("st", 0)] * 16

    def younger(tag):
        idx = max(i for i, o in enumerate(order) if o == tag)
        assert len(order) - 1 - idx < 64
        return len(order) - 1 - idx

    def issue(k):
        if k < NK:
            for x in y_loads(k):
                A(x)
            order.extend([("k", k)] * 8)
    issue(4)
    srd(A, sX, pX, 2048 * 1024)
    srd(A, sWA, pOUT, 2048 * 1024)
    A(f"s_lshl_b32 {s(sT)}, {s(sFP)}, 3")
    A(f"s_add_u32 {s(sT)}, {s(sT)}, {s(sFC)}")
    A(f"s_lshl_b32 {s(sT)}, {s(sT)}, 16")
    A(f"s_lshl_b32 {s(sT + 1)}, {s(sW)}, 11")
    A(f"s_add_u32 {s(sT)}, {s(sT)}, {s(sT + 1)}")
    A(f"s_add_u32 {s(sT)}, {s(sT)}, {WS_S}")
    A(f"v_and_b32 {v(TT)}, 15, {v(LANE)}")
    A(f"v_lshrrev_b32 {v(FA)}, 4, {v(LANE)}")
    A(f"v_lshlrev_b32 {v(TT)}, 10, {v(TT)}")
    A(f"v_lshl_add_u32 {v(TT)}, {v(FA)}, 3, {v(TT)}")
    A(f"s_lshl_b32 {s(sT + 1)}, {s(sFP)}, 16")
    A(f"s_lshl_b32 {s(sT + 2)}, {s(sW)}, 14")
    A(f"s_add_u32 {s(sT + 1)}, {s(sT + 1)}, {s(sT + 2)}")
    A(f"s_lshl_b32 {s(sT + 2)}, {s(sFC)}, 7")
    A(f"s_add_u32 {s(sT + 1)}, {s(sT + 1)}, {s(sT + 2)}")
    A(f"v_and_b32 {v(FA)}, 7, {v(LANE)}")
    A(f"v_lshlrev_b32 {v(FA)}, 2, {v(FA)}")
    A(f"s_lshl_b32 {s(sT + 2)}, {s(sFP)}, 7")
    A(f"s_add_u32 {s(sT + 2)}, {s(sT + 2)}, {WS_FLAG}")
    for k in range(NK):
        A(f"s_waitcnt vmcnt({younger(('k', k))})")
        if k == 4:
            A("s_barrier")
            A(f"s_cmp_lg_u32 {s(sW)}, 0")
            A("s_cbranch_scc1 M_NOPUB")
            A(f"v_mov_b32 {v(FV)}, 1")
            A("s_mov_b64 exec, 1")
            A(f"buffer_store_dword {v(FV)}, off, {s(sWS, 4)}, {s(sY + 3)} sc1")
            A("s_mov_b64 exec, -1")
            A.label("M_NOPUB")
            stamp(A, "pub")
        base = 32 * (k % NBUF)
        for nb in range(4):
            for qb in range(4):
                r = v(YA + 4 * (nb * 4 + qb), 4)
                A(mfma(r, a(base + 4 * nb, 4), a(base + 16 + 4 * qb, 4), "0" if k == 0 else r))
        if k == OPT["poll_at"]:
            A(f"buffer_load_dword {v(FV)}, {v(FA)}, {s(sWS, 4)}, {s(sT + 2)} offen sc1")
            order.append(("poll", 0))
        if k == OPT["check_at"]:
            A(f"s_waitcnt vmcnt({younger(('poll', 0))})")
            A(f"s_mov_b32 {s(sT + 3)}, {SPIN}")
            A.label("L_FLAGS")
            A(f"v_cmp_ne_u32 vcc, 1, {v(FV)}")
            A(f"s_sub_u32 {s(sT + 3)}, {s(sT + 3)}, 1")
            A("s_cbranch_scc1 M_GOT")
            A("s_cbranch_vccz M_GOT")
            A(f"buffer_load_dword {v(FV)}, {v(FA)}, {s(sWS, 4)}, {s(sT + 2)} offen sc1")
            A("s_waitcnt vmcnt(0)")
            A("s_branch L_FLAGS")
            A.label("M_GOT")
            stamp(A, "got")
        issue(k + NBUF)
        if k == OPT["check_at"]:
            for g in range(8):
                for m in range(2):
                    A(f"buffer_load_dwordx4 {v(SP + g * 8 + m * 4, 4)}, {v(LANE16)}, {s(sWS, 4)}, {s(sT)} offen offset:{m * 1024} sc1")
                A(f"s_add_u32 {s(sT)}, {s(sT)}, 8192")
                order.extend([("s", g)] * 2)
            for nb in range(4):
                A(f"buffer_load_dwordx2 {v(XR + nb * 2, 2)}, {v(TT)}, {s(sX, 4)}, {s(sT + 1)} offen offset:{nb * 32}")
            order.extend([("x", 0)] * 4)
    stamp(A, "y")
    A(f"s_lshl_b32 {s(sT + 2)}, {s(sW)}, 12")
    A(f"v_add_u32 {v(FA)}, {s(sT + 2)}, {v(LANE16)}")
    A(f"s_lshl_b32 {s(sT + 2)}, {s(sW)}, 14")
    A(f"v_add_u32 {v(FV)}, {s(sT + 2)}, {v(LANE16)}")
    A("s_nop 3")
    for qb in range(4):
        for nb in range(4):
            A(f"ds_write_b128 {v(FA)}, {v(YA + 4 * (nb * 4 + qb), 4)} offset:{qb * 16384 + nb * 1024}")
    A("s_waitcnt lgkmcnt(0)")
    A("s_barrier")
    for u in range(4):
        for nb in range(4):
            A(f"ds_read_b128 {v(YA + 16 * u + 4 * nb, 4)}, {v(FV)} offset:{u * 4096 + nb * 1024}")
        if u == 2:
            A("s_waitcnt lgkmcnt(4)")
            for i in range(0, 16, 2):
                A(f"v_pk_add_f32 {v(YA + i, 2)}, {v(YA + i, 2)}, {v(YA + 16 + i, 2)}")
    A(f"s_mov_b32 {s(sT + 2)}, 0xffff0000")
    A("s_waitcnt lgkmcnt(0)")
    for i in range(0, 16, 2):
        A(f"v_pk_add_f32 {v(YA + 32 + i, 2)}, {v(YA + 32 + i, 2)}, {v(YA + 48 + i, 2)}")
    for i in range(0, 16, 2):
        A(f"v_pk_add_f32 {v(YA + i, 2)}, {v(YA + i, 2)}, {v(YA + 32 + i, 2)}")
    E = 16
    for i in range(16):
        A(f"v_mul_f32 {v(E + i)}, {f32(-1.4426950408889634)}, {v(YA + i)}")
    for i in range(16):
        A(f"v_exp_f32 {v(E + i)}, {v(E + i)}")
    for i in range(16):
        A(f"v_add_f32 {v(E + i)}, 1.0, {v(E + i)}")
    for i in range(16):
        A(f"v_rcp_f32 {v(E + i)}, {v(E + i)}")
    A("s_nop 0")
    for i in range(0, 16, 2):
        A(f"v_pk_mul_f32 {v(E + i, 2)}, {v(E + i, 2)}, {v(YA + i, 2)}")
    stamp(A, "silu")
    for g in range(8):
        A(f"s_waitcnt vmcnt({younger(('s', g))})")
        for i in range(8):
            r = SP + g * 8 + i
            if g == 0:
                A(f"v_lshlrev_b32 {v(SS + 2 * i)}, 16, {v(r)}")
                A(f"v_and_b32 {v(SS + 2 * i + 1)}, {s(sT + 2)}, {v(r)}")
            else:
                t = 160 + 2 * (i % 4)
                A(f"v_lshlrev_b32 {v(t)}, 16, {v(r)}")
                A(f"v_and_b32 {v(t + 1)}, {s(sT + 2)}, {v(r)}")
                A(f"v_pk_add_f32 {v(SS + 2 * i, 2)}, {v(SS + 2 * i, 2)}, {v(t, 2)}")
    A("s_waitcnt vmcnt(0)")
    for i in range(8):
        A(f"v_lshlrev_b32 {v(32 + 2 * i)}, 16, {v(XR + i)}")
        A(f"v_and_b32 {v(32 + 2 * i + 1)}, {s(sT + 2)}, {v(XR + i)}")
    for i in range(0, 16, 2):
        A(f"v_pk_fma_f32 {v(E + i, 2)}, {v(E + i, 2)}, {v(SS + i, 2)}, {v(32 + i, 2)}")
    for i in range(8):
        A(f"v_cvt_pk_bf16_f32 {v(48 + i)}, {v(E + 2 * i)}, {v(E + 2 * i + 1)}")
    for nb in range(4):
        A(f"buffer_store_dwordx2 {v(48 + nb * 2, 2)}, {v(TT)}, {s(sWA, 4)}, {s(sT + 1)} offen offset:{nb * 32}")
    if OPT["stamps"]:
        A("s_waitcnt vmcnt(0)")
        stamp(A, "end")
        stamp_out(A, sWS, sW, WS_DBG, LANE16)


def generate(**opt):
    OPT.update(opt)
    del STAMP_NAMES[:]
    A = Asm()
    A.lines.append("; @launch grid=(256,1,1) block=(256,1,1) lds=163840")
    A('.amdgcn_target "amdgcn-amd-amdhsa--gfx950"')
    A(".text")
    M = Asm()
    main_kernel(M)
    if OPT["stamps"]:
        A.lines.insert(0, "; stamps: " + ",".join(STAMP_NAMES))
    for p in check_hazards(M.lines, "main"):
        print("HAZARD", p)
    A.lines += M.lines
    A(".p2align 8")
    A(".fill 64, 4, 0xbf800000")
    A('.section .rodata,"a"')
    A(".p2align 6")
    descriptor(A, KERNEL, 256 + NAGPR, 256)
    return A.text()


if __name__ == "__main__":
    out = sys.argv[1] if len(sys.argv) > 1 else f"cdna_kernels/{NAME}.s"
    opt = {}
    for x in sys.argv[2:]:
        k, val = x.split("=")
        opt[k] = int(val) if val.lstrip("-").isdigit() else val.replace("+", " ")
    open(out, "w").write(generate(**opt))
    print("wrote", out)
```
